```python
import torch

def _softmax(x, axis=-1):
    return torch.softmax(x, dim=axis)
def _gelu(x):
    return torch.nn.functional.gelu(x, approximate="tanh")
def _silu(x):
    return torch.nn.functional.silu(x)
def _sigmoid(x):
    return torch.sigmoid(x)
def _layernorm(x, axis=-1, eps=1e-5):
    m = x.mean(dim=axis, keepdim=True)
    v = x.var(dim=axis, keepdim=True, unbiased=False)
    return (x - m) / torch.sqrt(v + eps)
def _scatter_add(tgt, idx, src, axis=0):
    return tgt.clone().index_add_(axis, idx, src)
def _segment_sum(src, seg, n):
    out = torch.zeros((n,) + src.shape[1:], dtype=src.dtype)
    return out.index_add_(0, seg, src)
def _pad(x, pw):
    flat = tuple(v for pair in reversed(pw) for v in pair)
    return torch.nn.functional.pad(x, flat)

kernel_name = 'sequential_preLN__linear_attn_block__dense_activation_squared_relu__prompt'

def setup_inputs():

    _w = (lambda a: (lambda t: t.to(torch.bfloat16) if t.is_floating_point() else t)(torch.as_tensor(a)))
    def _A_setup():
        B, S, D = 1, 2048, 576
        return {
            "x": _w((lambda *s: torch.randn(*s, dtype=torch.bfloat16) * 0.05)(B, S, D)),
            "wqkv": _w((lambda *s: torch.randn(*s, dtype=torch.bfloat16) * 0.1)(D, 3 * D)),
            "wo": _w((lambda *s: torch.randn(*s, dtype=torch.bfloat16) * 0.05)(D, D)),
        }
    _A_in = _A_setup()

    def _B_setup():
        B, S, D, F = 1, 2048, 576, 4608
        return {
            "x": _w((lambda *s: torch.randn(*s, dtype=torch.bfloat16) * 0.05)(B, S, D)),
            "w1": _w((lambda *s: torch.randn(*s, dtype=torch.bfloat16) * 0.05)(D, F)),
            "b1": _w((lambda *s: torch.randn(*s, dtype=torch.bfloat16) * 0.2)(F)),
            "w2": _w((lambda *s: torch.randn(*s, dtype=torch.bfloat16) * 0.05)(F, D)),
            "b2": _w((lambda *s: torch.randn(*s, dtype=torch.bfloat16) * 1.6)(D)),
        }
    _B_in = _B_setup()

    return {
        "A_x": _A_in["x"],
        "A_wqkv": _A_in["wqkv"],
        "A_wo": _A_in["wo"],
        "B_x": _B_in["x"],
        "B_w1": _B_in["w1"],
        "B_b1": _B_in["b1"],
        "B_w2": _B_in["w2"],
        "B_b2": _B_in["b2"],
    }

def reference(A_x, A_wqkv, A_wo, B_x, B_w1, B_b1, B_w2, B_b2):
    def _A_ref(x, wqkv, wo):
        B, S, D = x.shape
        H = 32; Dh = D // H
        qkv = (lambda x, *d: x.permute(*d))((x @ wqkv).reshape(B, S, 3, H, Dh), 2, 0, 3, 1, 4)
        q, k, v = qkv[0], qkv[1], qkv[2]
        phi = lambda t: torch.where(t > 0, t + 1, torch.exp(t)) + 1e-6
        pq, pk = phi(q), phi(k)
        kv = torch.einsum("bhsd,bhse->bhde", pk, v)
        z = torch.einsum("bhsd->bhd", pk)
        num = torch.einsum("bhqd,bhde->bhqe", pq, kv)
        den = torch.einsum("bhqd,bhd->bhq", pq, z)[..., None] + 1e-6
        o = num / den
        return (lambda x, *d: x.permute(*d))(o, 0, 2, 1, 3).reshape(B, S, D) @ wo

    def _B_ref(x, w1, b1, w2, b2):
        h = torch.einsum("bsd,df->bsf", x, w1) + b1
        zero = torch.zeros_like(h)
        r = torch.where(h > zero, h, zero)
        h = r * r
        out = torch.einsum("bsf,fd->bsd", h, w2) + b2
        return out

    x = A_x
    h = x + _A_ref(_layernorm(x, axis=-1), A_wqkv, A_wo)
    h2 = h + _B_ref(_layernorm(h, axis=-1), B_w1, B_b1, B_w2, B_b2)
    return h2
```

```python
import re

REG_RE = re.compile(r"^(-|\|)?(abs\()?([vas])(\d+|\[(\d+):(\d+)\])\)?\|?$")

def regs_of(tok):
    tok = tok.strip()
    if tok in ("vcc",): return {("s", "vcc")}
    if tok in ("exec",): return {("s", "exec")}
    if tok in ("m0",): return {("s", "m0")}
    m = REG_RE.match(tok)
    if not m: return set()
    f = m.group(3)
    if m.group(5) is not None:
        return {(f, i) for i in range(int(m.group(5)), int(m.group(6)) + 1)}
    return {(f, int(m.group(4)))}

TRANS = ("v_exp_f32", "v_log_f32", "v_rcp_f32", "v_rsq_f32", "v_sqrt_f32", "v_sin_f32", "v_cos_f32")

class Op:
    def __init__(self, text, **kw):
        self.text = text
        self.kw = kw
        self.w = set(); self.r = set()
        self.kind = "other"
        self.pre_vm = None; self.pre_lg = None; self.pre_nop = 0
        self.parse()
    def parse(self):
        t = self.text.split(";")[0].strip()
        if not t or t.endswith(":") or t.startswith("."):
            self.kind = "meta"; return
        parts = t.split(None, 1)
        mn = parts[0]; self.mn = mn
        rest = parts[1] if len(parts) > 1 else ""
        ops = []; depth = 0; cur = ""
        for ch in rest:
            if ch in "[(": depth += 1
            if ch in "])": depth -= 1
            if ch == "," and depth == 0:
                ops.append(cur.strip()); cur = ""
            else: cur += ch
        if cur.strip(): ops.append(cur.strip())
        mods = ""
        if ops:
            sp = ops[-1].split(None, 1)
            ops[-1] = sp[0]
            mods = sp[1] if len(sp) > 1 else ""
        self.ops = ops; self.mods = mods
        R = [regs_of(o) for o in ops]
        allr = set().union(*R) if R else set()
        if mn.startswith("v_mfma"):
            self.kind = "mfma"; self.w = R[0]; self.r = R[1] | R[2] | R[3]
            self.ab = R[1] | R[2]; self.c = R[3]
            self.passes = 4 if "16x16x32" in mn or "16x16x16" in mn else 8
        elif mn.startswith("buffer_load") or mn.startswith("global_load"):
            self.kind = "vmem"
            if " lds" in " " + mods or mn.startswith("global_load_lds"):
                self.r = allr | {("s", "m0")}; self.dma = True
            else:
                self.w = R[0]; self.r = set().union(*R[1:])
        elif mn.startswith("buffer_store") or mn.startswith("global_store") or mn.startswith("buffer_atomic") or mn.startswith("global_atomic"):
            self.kind = "vmem"; self.r = allr
            self.wide_store = mn.endswith("x4") or mn.endswith("x3")
            self.data = R[0] if mn.startswith("buffer") else R[1]
            if "atomic" in mn and "sc0" in mods: self.w = R[0]
        elif mn in ("buffer_inv", "buffer_wbl2"):
            self.kind = "vmem"
        elif mn.startswith("ds_read") or mn.startswith("ds_bpermute") or mn.startswith("ds_swizzle"):
            self.kind = "ds"; self.w = R[0]; self.r = set().union(*R[1:])
        elif mn.startswith("ds_"):
            self.kind = "ds"; self.r = allr
        elif mn.startswith("s_load") or mn.startswith("s_memtime") or mn.startswith("s_memrealtime"):
            self.kind = "smem"; self.w = R[0]; self.r = set().union(*R[1:]) if len(R) > 1 else set()
        elif mn == "s_waitcnt":
            self.kind = "wait"
        elif mn == "s_nop":
            self.kind = "nop"; self.n = int(ops[0]) + 1
        elif mn.startswith("s_cbranch") or mn in ("s_branch", "s_barrier", "s_endpgm", "s_setprio", "s_sleep"):
            self.kind = "ctl"
        elif mn.startswith("s_cmp") or mn.startswith("s_bitcmp"):
            self.kind = "salu"; self.r = allr
        elif mn.startswith("s_"):
            self.kind = "salu"; self.w = set(R[0]); self.r = set().union(*R[1:]) if len(R) > 1 else set()
            if "saveexec" in mn: self.w |= {("s", "exec")}; self.r |= {("s", "exec")}
            if mn in ("s_addk_i32", "s_mulk_i32"): self.r |= R[0]
        elif mn.startswith("v_"):
            self.kind = "valu"
            self.w = set(R[0]); self.r = set().union(*R[1:]) if len(R) > 1 else set()
            if mn.startswith("v_permlane"): self.w |= R[1]; self.r |= R[0]
            if mn.startswith("v_fmac") or mn.startswith("v_dot2c") or mn.startswith("v_writelane"): self.r |= R[0]
            if mn.startswith("v_add_co") or mn.startswith("v_sub_co") or mn.startswith("v_addc_co"): self.w |= R[1]
            if mn.startswith("v_cmpx"): self.w |= {("s", "exec")}
            self.trans = any(mn.startswith(x) for x in TRANS)
            self.dot = mn.startswith("v_dot")
        else:
            raise ValueError("unknown op: " + t)

class Prog:
    def __init__(self):
        self.ops = []
        self.cur_loop = None
    def __call__(self, text, **kw):
        for line in text.split("\n"):
            line = line.strip()
            if line: self.add(Op(line, **kw))
    def add(self, op):
        op.loop = self.cur_loop
        self.ops.append(op)
        return op
    def raw(self, text):
        for line in text.split("\n"):
            op = Op("; raw"); op.text = "  " + line.strip(); op.kind = "meta"; self.add(op)
    def phantom_vm(self, tag):
        op = Op("; phantom", tag=tag); op.kind = "phantom"; self.add(op)
    def reset(self):
        op = Op("; reset"); op.kind = "reset"; self.add(op)
    def wait_vm(self, tag):
        op = Op("; wait_vm " + str(tag)); op.kind = "wvm"; op.tag = tag; self.add(op)
    def wait_lg(self, tag):
        op = Op("; wait_lg " + str(tag)); op.kind = "wlg"; op.tag = tag; self.add(op)
    def cond_begin(self):
        op = Op("; cond_begin"); op.kind = "cb"; self.add(op)
    def cond_end(self):
        op = Op("; cond_end"); op.kind = "ce"; self.add(op)
    def loop(self, name, n, body, tail):
        assert self.cur_loop is None
        for it in range(n):
            self.cur_loop = (name, it)
            body(it)
            self(tail)
        self.cur_loop = None

    def resolve(self):
        ops = self.ops
        vmq = []; lgq = []
        for op in ops:
            need_vm = None; need_lg = None
            touched = op.r | op.w
            if op.kind == "reset":
                vmq = []; lgq = []; continue
            if op.kind == "wvm":
                idx = [i for i, o in enumerate(vmq) if o.kw.get("tag") == op.tag]
                if idx: need_vm = len(vmq) - 1 - max(idx)
            elif op.kind == "wlg":
                idx = [i for i, o in enumerate(lgq) if o.kw.get("tag") == op.tag]
                if idx: need_lg = len(lgq) - 1 - max(idx)
            elif op.kind == "wait":
                m = re.search(r"vmcnt\((\d+)\)", op.text)
                if m:
                    n = int(m.group(1)); vmq = vmq[len(vmq) - n:] if n < len(vmq) else vmq
                    if n == 0: vmq = []
                m = re.search(r"lgkmcnt\((\d+)\)", op.text)
                if m:
                    n = int(m.group(1)); lgq = lgq[len(lgq) - n:] if n < len(lgq) else lgq
                    if n == 0: lgq = []
                continue
            elif touched:
                idx = [i for i, o in enumerate(vmq) if o.w & touched]
                if idx: need_vm = len(vmq) - 1 - max(idx)
                idx = [i for i, o in enumerate(lgq) if o.w & touched]
                if idx:
                    need_lg = len(lgq) - 1 - max(idx)
                    if any(o.kind == "smem" for o in lgq): need_lg = 0
            if need_vm is not None:
                need_vm = min(need_vm, 63)
                op.pre_vm = need_vm
                vmq = vmq[len(vmq) - need_vm:] if need_vm else []
            if need_lg is not None:
                need_lg = min(need_lg, 15)
                op.pre_lg = need_lg
                lgq = lgq[len(lgq) - need_lg:] if need_lg else []
            if op.kind in ("vmem", "phantom"): vmq.append(op)
            if op.kind in ("ds", "smem"): lgq.append(op)
            if op.kind == "smem" and not op.mn == "s_load_dword": lgq.append(op)
            assert len(vmq) <= 63 or op.kind != "vmem" or True
        self.fold_waits()
        hist = []
        def weight(o):
            w = 0
            if o.pre_vm is not None or o.pre_lg is not None: w += 1
            w += o.pre_nop
            return w
        seq = []
        cond_depth = 0; cond_id = 0
        for i, op in enumerate(ops):
            if op.kind == "cb": cond_depth += 1; cond_id += 1
            op.cond = cond_id if cond_depth else 0
            if op.kind == "ce": cond_depth -= 1
        for i, op in enumerate(ops):
            if op.kind in ("meta", "cb", "ce", "phantom", "reset"): continue
            need = 0
            dist = 1 if (op.pre_vm is not None or op.pre_lg is not None) else 0
            if op.kind in ("wvm", "wlg"): continue
            j = i - 1
            while j >= 0 and dist < 20:
                p = ops[j]
                req = hazard(p, op)
                if req > dist: need = max(need, req - dist)
                skip = p.cond and p.cond != op.cond
                if not skip:
                    if p.kind == "nop": dist += p.n
                    elif p.kind in ("meta", "cb", "ce", "phantom", "reset"): pass
                    elif p.kind in ("wvm", "wlg"): pass
                    else: dist += 1
                    dist += weight(p)
                j -= 1
            op.pre_nop = need
        self.fold_nops()
    def groups(self):
        g = {}
        for op in self.ops:
            if op.loop: g.setdefault(op.loop[0], {}).setdefault(op.loop[1], []).append(op)
        return g
    def fold_waits(self):
        for name, its in self.groups().items():
            n = len(its[0])
            for it in its.values():
                assert len(it) == n, f"loop {name}: iteration length differs"
            for k in range(n):
                col = [its[i][k] for i in sorted(its)]
                assert len({o.text for o in col}) == 1, f"loop {name}: text differs: {[o.text for o in col]}"
                vm = [o.pre_vm for o in col if o.pre_vm is not None]
                lg = [o.pre_lg for o in col if o.pre_lg is not None]
                for o in col:
                    o.pre_vm = min(vm) if vm else None
                    o.pre_lg = min(lg) if lg else None
    def fold_nops(self):
        for name, its in self.groups().items():
            n = len(its[0])
            for k in range(n):
                col = [its[i][k] for i in sorted(its)]
                mx = max(o.pre_nop for o in col)
                for o in col: o.pre_nop = mx
    def text(self):
        self.resolve()
        out = []
        seen = set()
        for op in self.ops:
            if op.loop:
                if op.loop[1] != 0: continue
                if op.loop[0] not in seen:
                    seen.add(op.loop[0]); out.append(f"{op.loop[0]}:")
            w = []
            if op.pre_vm is not None: w.append(f"vmcnt({op.pre_vm})")
            if op.pre_lg is not None: w.append(f"lgkmcnt({op.pre_lg})")
            if w: out.append("  s_waitcnt " + " ".join(w))
            n = op.pre_nop
            while n > 0:
                k = min(n, 16); out.append(f"  s_nop {k-1}"); n -= k
            if op.kind in ("wvm", "wlg", "cb", "ce", "phantom", "reset"): continue
            out.append(("  " if op.kind != "meta" else "") + op.text)
        return "\n".join(out) + "\n"

def isv(s): return {x for x in s if x[0] in "va"}
def iss(s): return {x for x in s if x[0] == "s"}

def hazard(p, c):
    req = 0
    pk, ck = p.kind, c.kind
    if pk == "valu":
        pv = isv(p.w); ps = iss(p.w)
        if ck == "mfma" and pv & c.r: req = max(req, 2)
        if ck == "valu":
            if c.mn.startswith("v_permlane") and pv & c.r: req = max(req, 2)
            if ("dpp" in c.mn or "row_" in c.mods or "quad_perm" in c.mods) and pv & c.r: req = max(req, 2)
            if (c.mn.startswith("v_readfirstlane") or c.mn.startswith("v_readlane")) and pv & c.r: req = max(req, 1)
            if p.trans and not c.trans and pv & c.r: req = max(req, 1)
            if p.trans and pv & c.r: req = max(req, 1)
            if ps & c.r: req = max(req, 2)
            if p.dot and (pv & (c.r | c.w)):
                same = c.mn == p.mn and not (pv & set().union(*[regs_of(o) for o in c.ops[1:3]]))
                if not same: req = max(req, 3)
            if ("sdwa" in p.mn or "op_sel" in p.mods) and pv & (c.r | c.w): req = max(req, 1)
        if p.dot and ck in ("mfma", "vmem", "ds") and pv & c.r: req = max(req, 3)
        if ck == "vmem" and ps & c.r: req = max(req, 5)
        if ck == "salu" and ps & c.r: req = max(req, 2)
        if ("s", "exec") in p.w and ck in ("mfma", "valu"): req = max(req, 5)
        if p.trans and ck in ("vmem", "ds") and pv & c.r: req = max(req, 1)
    if pk == "salu":
        if ("s", "m0") in p.w and ck == "vmem" and getattr(c, "dma", False): req = max(req, 1)
    if pk == "mfma":
        P = p.passes
        raw = {4: 8, 8: 12}[P]
        if ck == "mfma":
            if p.w & c.ab: req = max(req, raw)
            if p.w & c.c and not (p.w == c.c and c.passes == P): req = max(req, {4: 6, 8: 10}[P])
            if p.w & c.w and not (p.w & c.c): req = max(req, raw)
        elif ck in ("valu", "vmem", "ds"):
            if p.w & (c.r | c.w): req = max(req, raw)
        if ck == "valu" and p.c & c.w: req = max(req, {4: 3, 8: 7}[P])
    if pk == "vmem" and getattr(p, "wide_store", False):
        if ck == "valu" and p.data & c.w: req = max(req, 2)
        elif p.data & c.w: req = max(req, 1)
    return req

class Regs:
    def __init__(self, f, start, limit):
        self.f = f; self.next = start; self.limit = limit; self.names = {}
    def alloc(self, n=1, align=1, name=None):
        a = (self.next + align - 1) // align * align
        assert a + n <= self.limit, f"out of {self.f} regs ({name})"
        self.next = a + n
        return a

def vr(b, n=1, f="v"):
    return f"{f}{b}" if n == 1 else f"{f}[{b}:{b+n-1}]"
```

```python
from asmlib import *
S, D, F, H = 2048, 576, 4608, 32
KA_X, KA_WQKV, KA_WO, KA_BX, KA_W1, KA_B1, KA_W2, KA_B2, KA_OUT, KA_DBG, KA_WS = [8 * i for i in range(11)]
WS_W = 0
SZ_W = 8 * 4 * 324 * 1024
WS_WO = WS_W + SZ_W
SZ_WO = 8 * 4 * 25 * 1024
WS_CS = WS_WO + SZ_WO
SZ_CS = 3 * F * 4
WS_KV = (WS_CS + SZ_CS + 4095) // 4096 * 4096
KVH = 1408
SZ_KV = 32 * KVH
WS_PQ = (WS_KV + SZ_KV + 4095) // 4096 * 4096
SZ_PQ = 128 * 4 * 4608
WS_H = WS_PQ + SZ_PQ
SZ_H = S * D * 2
WS_ST = WS_H + SZ_H
SZ_ST = S * 64
WS_P = WS_ST + SZ_ST
SZ_P = 8 * 32 * 72 * 1024
WS_END = WS_P + SZ_P

def srd(a, s, base_pair, off, size, off_sreg=None):
    lo, hi = base_pair, base_pair + 1
    if off_sreg is not None:
        a(f"s_add_u32 s{s}, s{lo}, s{off_sreg}")
        a(f"s_addc_u32 s{s+1}, s{hi}, 0")
        if off:
            a(f"s_add_u32 s{s}, s{s}, {off}")
            a(f"s_addc_u32 s{s+1}, s{s+1}, 0")
    elif off:
        a(f"s_add_u32 s{s}, s{lo}, {off}")
        a(f"s_addc_u32 s{s+1}, s{hi}, 0")
    else:
        a(f"s_mov_b32 s{s}, s{lo}")
        a(f"s_mov_b32 s{s+1}, s{hi}")
    a(f"s_and_b32 s{s+1}, s{s+1}, 0xffff")
    a(f"s_mov_b32 s{s+2}, {size}")
    a(f"s_mov_b32 s{s+3}, 0x20000")

def header(name):
    return f".text\n.globl {name}\n.p2align 8\n.type {name},@function\n{name}:\n"

def descriptor(name, vgpr, accum, sgpr=96):
    return (f'.section .rodata,"a"\n.p2align 6\n.amdhsa_kernel {name}\n'
            f"  .amdhsa_next_free_vgpr {vgpr}\n  .amdhsa_next_free_sgpr {sgpr}\n  .amdhsa_accum_offset {accum}\n"
            "  .amdhsa_group_segment_fixed_size 0\n  .amdhsa_kernarg_size 88\n  .amdhsa_user_sgpr_count 2\n"
            "  .amdhsa_user_sgpr_kernarg_segment_ptr 1\n  .amdhsa_system_sgpr_workgroup_id_x 1\n"
            "  .amdhsa_float_denorm_mode_32 3\n"
            ".end_amdhsa_kernel\n")

def interleave(main, fill, start=0, per=None):
    out = []; n = len(main) - start
    fi = 0
    for k, m in enumerate(main):
        out.append(m)
        if k >= start:
            want = (len(fill) * (k - start + 1) + n - 1) // n if per is None else min(len(fill), per * (k - start + 1))
            while fi < want:
                out.append(fill[fi]); fi += 1
    out += fill[fi:]
    return out

def xg_reduce(a, v, t):
    a(f"v_mov_b32 v{t}, v{v}")
    a(f"v_permlane16_swap_b32 v{v}, v{t}")
    a(f"v_add_f32 v{v}, v{v}, v{t}")
    a(f"v_mov_b32 v{t}, v{v}")
    a(f"v_permlane32_swap_b32 v{v}, v{t}")
    a(f"v_add_f32 v{v}, v{v}, v{t}")

def xg_reduce_n(a, vs, ts):
    for op in ("v_permlane16_swap_b32", "v_permlane32_swap_b32"):
        for v, t in zip(vs, ts): a(f"v_mov_b32 v{t}, v{v}")
        for v, t in zip(vs, ts): a(f"{op} v{v}, v{t}")
        for v, t in zip(vs, ts): a(f"v_add_f32 v{v}, v{v}, v{t}")

import struct
def f2u(x): return struct.unpack("<I", struct.pack("<f", x))[0]
def fhex(x): return hex(f2u(x))
KV_MM, KV_AM, KV_RM, KV_AR = 0, 1024, 1216, 1344
OOB = 0x7ffffff0
```

```python
from common import *
K1_LDS = 163840
CH = 18432
XB = CH

def gen_sw(a, st_flags):
    sJ, sN, sT, sT2, sCb, sTh, sLds = 32, 33, 34, 35, 36, 37, 38
    sSrc, sDst, sAux = 8, 12, 16
    ONES = 39
    sD = 40
    vLane, vOff, vRd, vT, vT2, vL16 = 1, 2, 3, 8, 9, 10
    vAcc = 12
    vF = 16
    a(f"s_load_dwordx2 s[4:5], s[0:1], {KA_WS}")
    a(f"s_load_dwordx4 s[20:23], s[0:1], {KA_W1}")
    a(f"s_load_dwordx2 s[24:25], s[0:1], {KA_W2}")
    a(f"s_load_dwordx2 s[26:27], s[0:1], {KA_WO}")
    a(f"s_load_dwordx2 s[28:29], s[0:1], {KA_DBG}")
    a(f"v_lshrrev_b32 v{vT}, 6, v0\nv_readfirstlane_b32 s{sT}, v{vT}")
    a(f"s_and_b32 s{sJ}, s2, 7\ns_lshr_b32 s{sN}, s2, 3\ns_lshl_b32 s{sN}, s{sN}, 3\ns_add_u32 s{sN}, s{sN}, s{sT}")
    a(f"s_mul_i32 s{sLds}, s{sT}, 20480")
    a(f"v_and_b32 v{vLane}, 63, v0\nv_lshlrev_b32 v{vL16}, 4, v{vLane}")
    a("s_waitcnt lgkmcnt(0)")
    a(f"s_cmp_ge_u32 s{sN}, 54\ns_cbranch_scc1 L_sw_misc")
    a(f"s_cmp_ge_u32 s{sN}, 27\ns_cselect_b32 s44, 1, 0\ns_cselect_b32 s{sT}, 27, 0\ns_sub_u32 s{sN}, s{sN}, s{sT}")
    a(f"s_mul_i32 s{sCb}, s{sN}, 86\ns_lshr_b32 s{sCb}, s{sCb}, 8\ns_mul_i32 s{sT}, s{sCb}, 3\ns_sub_u32 s{sTh}, s{sN}, s{sT}")
    srd(a, sDst, 4, WS_W, SZ_W)
    for tt in range(4):
        a(f"s_lshl_b32 s{sT}, s{sCb}, 2\ns_add_u32 s{sT}, s{sT}, {tt}")
        a(f"s_mul_i32 s{sT2}, s{sT}, 57\ns_lshr_b32 s{sT2}, s{sT2}, 9")
        a(f"s_mul_i32 s45, s{sT2}, 9\ns_sub_u32 s{sT}, s{sT}, s45")
        a(f"s_and_b32 s45, s{sT2}, s44\ns_cmp_eq_u32 s{sT}, 0\ns_cselect_b32 s46, 8, -1\ns_mul_i32 s45, s45, s46\ns_add_u32 s{sT}, s{sT}, s45")
        a(f"s_mul_i32 s{sT}, s{sT}, 18\ns_mul_i32 s{sT2}, s{sT2}, 324\ns_add_u32 s{sT}, s{sT}, s{sT2}")
        a(f"s_mul_i32 s{sT2}, s{sJ}, 1296\ns_add_u32 s{sT}, s{sT}, s{sT2}\ns_mul_i32 s{sT2}, s44, 162\ns_add_u32 s{sT}, s{sT}, s{sT2}")
        a(f"s_mul_i32 s{sT2}, s{sTh}, 6\ns_add_u32 s{sT}, s{sT}, s{sT2}\ns_lshl_b32 s{sD+tt}, s{sT}, 10")
    a(f"s_mov_b32 s{ONES}, 0x3f803f80")
    a("s_cmp_eq_u32 s44, 1\ns_cbranch_scc1 L_sw_w2")
    common_tail = []
    for job in ("w1", "w2"):
        b = Prog() if False else a
        if job == "w2": a("L_sw_w2:")
        RS = 9216 if job == "w1" else 1152
        if job == "w1":
            a(f"s_mul_i32 s{sT}, s{sTh}, {192*RS}\ns_mul_i32 s{sT2}, s{sJ}, 1152\ns_add_u32 s{sT}, s{sT}, s{sT2}\ns_lshl_b32 s{sT2}, s{sCb}, 7\ns_add_u32 s{sT}, s{sT}, s{sT2}")
            a(f"s_sub_u32 s47, {D*F*2}, s{sT}")
            srd(a, sSrc, 20, 0, 0, sT)
        else:
            a(f"s_mul_i32 s{sT}, s{sJ}, 576\ns_mul_i32 s{sT2}, s{sTh}, 192\ns_add_u32 s{sT}, s{sT}, s{sT2}\ns_mul_i32 s{sT}, s{sT}, {RS}\ns_lshl_b32 s{sT2}, s{sCb}, 7\ns_add_u32 s{sT}, s{sT}, s{sT2}")
            a(f"s_sub_u32 s47, {D*F*2}, s{sT}")
            srd(a, sSrc, 24, 0, 0, sT)
        a(f"s_mov_b32 s{sSrc+2}, s47")
        a(f"v_lshrrev_b32 v{vT}, 3, v{vLane}\nv_mul_u32_u24 v{vOff}, {RS}, v{vT}")
        a(f"v_bfe_u32 v{vT}, v{vLane}, 4, 1\nv_lshlrev_b32 v{vT}, {1 if job=='w1' else 2}, v{vT}\nv_and_b32 v{vT2}, 7, v{vLane}\nv_xor_b32 v{vT}, v{vT}, v{vT2}")
        if job == "w1":
            a(f"v_xor_b32 v{vT2}, 4, v{vT}\nv_lshl_add_u32 v7, v{vT2}, 4, v{vOff}")
        a(f"v_lshl_add_u32 v{vOff}, v{vT}, 4, v{vOff}")
        def dma(u):
            for pc in range(4):
                a(f"s_add_u32 m0, s{sLds}, {(u % 5)*4096 + pc*1024}")
                a(f"s_mov_b32 s{sT}, {(u*32 + pc*8)*RS}")
                vo = 7 if (job == "w1" and pc & 1) else vOff
                a(f"buffer_load_dwordx4 v{vo}, s[{sSrc}:{sSrc+3}], s{sT} offen lds", tag=f"{job}u{u}")
        for u in range(5): dma(u)
        a(f"v_bfe_u32 v{vT}, v{vLane}, 2, 2")
        a(f"v_lshrrev_b32 v{vT2}, 4, v{vLane}")
        if job == "w1":
            a(f"v_lshl_add_u32 v11, v{vT2}, 3, v{vT}\nv_lshlrev_b32 v11, 7, v11")
            a(f"v_lshrrev_b32 v{vT}, 1, v{vT}\nv_and_b32 v{vT2}, 1, v{vT2}\nv_lshl_or_b32 v{vT}, v{vT2}, 1, v{vT}")
            a(f"v_and_b32 v{vT2}, 3, v{vLane}\nv_lshl_add_u32 v11, v{vT2}, 3, v11\nv_add_u32 v11, s{sLds}, v11")
            for tt in range(4):
                a(f"v_xor_b32 v{vT2}, {tt}, v{vT}\nv_lshl_add_u32 v{vRd+tt}, v{vT2}, 5, v11")
            hfo = 512
        else:
            a(f"v_lshl_add_u32 v11, v{vT2}, 2, v{vT}\nv_lshlrev_b32 v11, 7, v11\nv_add_u32 v11, s{sLds}, v11")
            a(f"v_lshrrev_b32 v{vT}, 1, v{vT}\nv_lshlrev_b32 v{vT}, 2, v{vT}\nv_and_b32 v{vT2}, 3, v{vLane}\nv_xor_b32 v{vT}, v{vT}, v{vT2}")
            for tt in range(4):
                a(f"v_xor_b32 v{vT2}, {4*(tt>>1)}, v{vT}\nv_lshl_add_u32 v{vRd+tt}, v{vT2}, 4, v11")
                if tt & 1: a(f"v_add_u32 v{vRd+tt}, 8, v{vRd+tt}")
            hfo = 2048
        if job == "w1":
            for tt in range(4): a(f"v_mov_b32 v{vAcc+tt}, 0")
        for u in range(6):
            a.wait_vm(f"{job}u{u}")
            f0 = vF + 16 * (u & 1)
            for tt in range(4):
                for hf in range(2):
                    a(f"ds_read_b64_tr_b16 {vr(f0+4*tt+2*hf,2)}, v{vRd+tt} offset:{(u%5)*4096 + hf*hfo}")
            if u == 0:
                a("s_waitcnt lgkmcnt(0)"); dma(5)
            for tt in range(4):
                a(f"buffer_store_dwordx4 {vr(f0+4*tt,4)}, v{vL16}, s[{sDst}:{sDst+3}], s{sD+tt} offen offset:{(u%4)*1024}{st_flags}")
            if u == 3:
                for tt in range(4): a(f"s_add_u32 s{sD+tt}, s{sD+tt}, 4096")
            if job == "w1":
                for d in range(4):
                    for tt in range(4):
                        a(f"v_dot2_f32_bf16 v{vAcc+tt}, v{f0+4*tt+d}, s{ONES}, v{vAcc+tt}")
        if job == "w1":
            xg_reduce_n(a, [vAcc + t for t in range(4)], [vF + t for t in range(4)])
            a(f"v_lshrrev_b32 v{vT2}, 4, v{vLane}")
            for tt in range(1, 4):
                a(f"v_cmp_eq_u32 vcc, {tt}, v{vT2}\nv_cndmask_b32 v{vAcc}, v{vAcc}, v{vAcc+tt}, vcc")
            srd(a, sAux, 4, WS_CS, SZ_CS)
            a(f"s_mul_i32 s{sT}, s{sTh}, {F}\ns_mul_i32 s{sT2}, s{sJ}, 576\ns_add_u32 s{sT}, s{sT}, s{sT2}\ns_lshl_b32 s{sT2}, s{sCb}, 6\ns_add_u32 s{sT}, s{sT}, s{sT2}\ns_lshl_b32 s{sT}, s{sT}, 2")
            a(f"v_lshlrev_b32 v{vT}, 2, v{vLane}")
            a(f"buffer_store_dword v{vAcc}, v{vT}, s[{sAux}:{sAux+3}], s{sT} offen")
        a("s_endpgm")
        a.reset()
    a("L_sw_misc:")
    a(f"s_cmp_eq_u32 s{sN}, 54\ns_cbranch_scc1 L_sw_zero")
    a(f"s_cmp_lt_u32 s{sN}, 56\ns_cbranch_scc1 L_k1_end")
    a(f"s_and_b32 s{sT}, s{sN}, 1\ns_cmp_eq_u32 s{sT}, 1\ns_cbranch_scc1 L_k1_end")
    sG = 36
    a(f"s_sub_u32 s{sG}, s{sN}, 56\ns_lshr_b32 s{sG}, s{sG}, 1")
    a(f"s_mul_i32 s{sT}, s{sG}, {144*1152}\ns_mul_i32 s{sT2}, s{sJ}, 144\ns_add_u32 s{sT}, s{sT}, s{sT2}")
    a(f"s_sub_u32 s47, {D*D*2}, s{sT}\ns_min_u32 s47, s47, {144*1152}")
    srd(a, sSrc, 26, 0, 0, sT)
    a(f"s_mov_b32 s{sSrc+2}, s47")
    a(f"s_lshl_b32 s{sT}, s{sJ}, 2\ns_add_u32 s{sT}, s{sT}, s{sG}\ns_mul_i32 s{sT}, s{sT}, {25*1024}")
    srd(a, sDst, 4, WS_WO, 25 * 1024, sT)
    a(f"v_mul_u32_u24 v{vT}, 57, v{vLane}\nv_lshrrev_b32 v{vT}, 9, v{vT}\nv_mul_u32_u24 v{vT2}, 9, v{vT}\nv_sub_u32 v7, v{vLane}, v{vT2}")
    a(f"v_mul_u32_u24 v{vOff}, 1152, v{vT}\nv_lshl_add_u32 v{vOff}, v7, 4, v{vOff}")
    a(f"v_mov_b32 v11, {7*1152+16}\nv_mov_b32 v12, {8*1152+16-144}")
    for n in range(21):
        a(f"s_add_u32 m0, s{sLds}, {n*1024}")
        a(f"buffer_load_dwordx4 v{vOff}, s[{sSrc}:{sSrc+3}], 0 offen lds", tag="wo")
        if n < 20:
            a(f"v_cmp_eq_u32 vcc, 8, v7\nv_add_u32 v7, 1, v7\nv_cndmask_b32 v{vT}, v11, v12, vcc\nv_cndmask_b32 v7, v7, 0, vcc\nv_add_u32 v{vOff}, v{vOff}, v{vT}")
    a(f"v_bfe_u32 v{vT}, v{vLane}, 2, 2\nv_lshrrev_b32 v{vT2}, 4, v{vLane}")
    a(f"v_lshl_add_u32 v11, v{vT2}, 2, v{vT}\nv_mul_u32_u24 v11, 144, v11\nv_add_u32 v11, s{sLds}, v11")
    a(f"v_lshrrev_b32 v12, 1, v{vT2}\nv_and_b32 v13, 2, v{vT}\nv_add_u32 v12, v12, v13\nv_mul_u32_u24 v12, 36, v12")
    a(f"v_and_b32 v13, 1, v{vT2}\nv_lshl_add_u32 v12, v13, 1, v12\nv_and_b32 v13, 1, v{vT}\nv_add3_u32 v12, v12, v13, 16")
    a(f"v_mul_u32_u24 v12, 144, v12\nv_add_u32 v12, s{sLds}, v12")
    a(f"v_and_b32 v13, 3, v{vLane}")
    a(f"v_lshl_add_u32 v3, v13, 4, v11\nv_lshl_add_u32 v4, v13, 3, v11\nv_lshl_add_u32 v5, v13, 4, v12\nv_lshl_add_u32 v6, v13, 3, v12")
    a.wait_vm("wo")
    k = 0
    for v in range(5):
        for t in range(5):
            f0 = vF + 4 * (k % 8)
            col = (64 * (t >> 1) + 8 * (t & 1)) if t < 4 else 128
            if v < 4:
                ad = 3 if t < 4 else 4
                for hf in range(2):
                    a(f"ds_read_b64_tr_b16 {vr(f0+2*hf,2)}, v{ad} offset:{(36*v+20*hf)*144+col}")
            else:
                ad = 5 if t < 4 else 6
                a(f"ds_read_b64_tr_b16 {vr(f0,2)}, v{ad} offset:{col}")
                a(f"v_mov_b32 v{f0+2}, 0\nv_mov_b32 v{f0+3}, 0")
            if k % 4 == 0: a(f"s_mov_b32 s{sT}, {k*1024}")
            a(f"buffer_store_dwordx4 {vr(f0,4)}, v{vL16}, s[{sDst}:{sDst+3}], s{sT} offen offset:{(k%4)*1024}{st_flags}")
            k += 1
    a("s_endpgm")
    a.reset()
    a("L_sw_zero:")
    a(f"s_mul_i32 s{sT}, s{sJ}, {4*KVH}")
    srd(a, sDst, 4, WS_KV, 4 * KVH, sT)
    srd(a, sAux, 28, 0, 256)
    for r in range(4): a(f"v_mov_b32 v{vF+r}, 0")
    for n in range(6):
        if n == 4: a(f"v_add_u32 v{vL16}, 4096, v{vL16}")
        a(f"buffer_store_dwordx4 {vr(vF,4)}, v{vL16}, s[{sDst}:{sDst+3}], 0 offen offset:{(n%4)*1024} sc0 sc1")
    a(f"s_lshl_b32 s{sT}, s{sJ}, 2\nv_mov_b32 v{vT}, s{sT}\nv_mov_b32 v{vT2}, 1")
    a("s_waitcnt vmcnt(0)")
    a(f"buffer_store_dword v{vT2}, v{vT}, s[{sAux}:{sAux+3}], 0 offen sc0 sc1")
    a("s_endpgm")
    a.reset()

def gen_k1(name, st_flags=""):
    a = Prog()
    a("s_cmp_ge_u32 s2, 256\ns_cbranch_scc1 L_k1_end")
    a("s_cmp_ge_u32 s2, 64\ns_cbranch_scc1 L_k1_gemm")
    gen_sw(a, st_flags)
    a("L_k1_gemm:")
    V = Regs("v", 1, 256)
    vLane = V.alloc(); vT = V.alloc(); vT2 = V.alloc(); vXo = V.alloc(); vRdM = V.alloc(); vRdR = V.alloc(); vL16 = V.alloc()
    vW = V.alloc(3); vG = V.alloc(); vM = V.alloc()
    vS = V.alloc(8, 4)
    vX = V.alloc(72, 4); vFr = V.alloc(64, 4); vAcc = V.alloc(36, 4); vTmp = V.alloc(16, 4)
    sX, sW, sO, sDbg = 8, 12, 16, 20
    sWave, sJ, sI, sT, sT2, sRole, sRot, ONES = 32, 33, 34, 35, 36, 37, 38, 39
    sXo, sWo = 40, 50
    sLd = 60
    a(f"s_load_dwordx4 s[24:27], s[0:1], {KA_X}")
    a(f"s_load_dwordx4 s[4:7], s[0:1], {KA_DBG}")
    a(f"v_lshrrev_b32 v{vT}, 6, v0\nv_readfirstlane_b32 s{sWave}, v{vT}")
    a(f"s_cmp_ge_u32 s2, 192\ns_cselect_b32 s{sRole}, 1, 0")
    a(f"s_sub_u32 s{sT}, s2, 64\ns_lshr_b32 s{sI}, s{sT}, 3\ns_and_b32 s{sJ}, s2, 7")
    a(f"s_sub_u32 s{sT}, s2, 192\ns_lshr_b32 s{sT}, s{sT}, 2\ns_and_b32 s{sT2}, s2, 3")
    a(f"s_cmp_eq_u32 s{sRole}, 1\ns_cselect_b32 s{sI}, s{sT}, s{sI}\ns_cselect_b32 s{sJ}, s{sT2}, s{sJ}")
    a(f"s_lshl_b32 s{sT}, s{sJ}, s{sRole}\ns_add_u32 s{sRot}, s{sI}, s{sT}")
    a(f"s_mul_i32 s{sT}, s{sRot}, 57\ns_lshr_b32 s{sT}, s{sT}, 9\ns_mul_i32 s{sT}, s{sT}, 9\ns_sub_u32 s{sRot}, s{sRot}, s{sT}")
    for c in range(9):
        a(f"s_lshl_b32 s{sXo+c}, s{sRot}, 7\ns_mul_i32 s{sWo+c}, s{sRot}, {64*3456}")
        if c < 8: a(f"s_add_u32 s{sRot}, s{sRot}, 1\ns_cmp_eq_u32 s{sRot}, 9\ns_cselect_b32 s{sRot}, 0, s{sRot}")
    a(f"v_and_b32 v{vLane}, 63, v0\nv_and_b32 v{vM}, 15, v0\nv_bfe_u32 v{vG}, v0, 4, 2\nv_lshlrev_b32 v{vL16}, 4, v{vLane}")
    a(f"s_lshl_b32 s{sT}, s{sI}, 7\ns_lshl_b32 s{sT2}, s{sWave}, 4\ns_add_u32 s{sT}, s{sT}, s{sT2}")
    a(f"v_add_u32 v{vXo}, s{sT}, v{vM}\nv_mul_u32_u24 v{vXo}, 1152, v{vXo}\nv_lshl_add_u32 v{vXo}, v{vG}, 4, v{vXo}")
    a("s_waitcnt lgkmcnt(0)")
    srd(a, sX, 24, 0, S * D * 2)
    srd(a, sW, 26, 0, D * 3 * D * 2)
    for c in range(9):
        for ks in range(2):
            a(f"buffer_load_dwordx4 {vr(vX+4*(2*c+ks),4)}, v{vXo}, s[{sX}:{sX+3}], s{sXo+c} offen offset:{64*ks}")
    a(f"s_mul_i32 s{sT}, s{sJ}, 144\ns_add_u32 s61, s{sT}, 1152\ns_lshl_b32 s{sT}, s{sT}, 1")
    a(f"s_cmp_eq_u32 s{sRole}, 1\ns_cselect_b32 s61, s{sT}, s61\ns_cselect_b32 s62, 0, {1152-144}")
    a(f"s_mul_i32 s{sLd}, s{sWave}, 3072\ns_mul_i32 s{sT}, s{sWave}, 192")
    for n in range(3):
        a(f"v_add_u32 v{vT}, s{sT}, v{vLane}")
        if n: a(f"v_add_u32 v{vT}, {64*n}, v{vT}")
        a(f"v_mul_u32_u24 v{vT2}, 3641, v{vT}\nv_lshrrev_b32 v{vT2}, 16, v{vT2}")
        a(f"v_mul_u32_u24 v{vTmp}, 18, v{vT2}\nv_sub_u32 v{vT}, v{vT}, v{vTmp}")
        a(f"v_and_b32 v{vTmp}, 0x33, v{vT2}\nv_bfe_u32 v{vTmp+1}, v{vT2}, 2, 1\nv_lshl_or_b32 v{vTmp}, v{vTmp+1}, 3, v{vTmp}\nv_bfe_u32 v{vTmp+1}, v{vT2}, 3, 1\nv_lshl_or_b32 v{vTmp}, v{vTmp+1}, 2, v{vTmp}")
        a(f"v_mul_u32_u24 v{vTmp}, 3456, v{vTmp}\nv_lshl_add_u32 v{vTmp}, v{vT}, 4, v{vTmp}\nv_add_u32 v{vTmp}, s61, v{vTmp}")
        a(f"v_cmp_lt_u32 vcc, 8, v{vT}\nv_add_u32 v{vTmp+1}, s62, v{vTmp}\nv_cndmask_b32 v{vW+n}, v{vTmp}, v{vTmp+1}, vcc")
    def wdma(c):
        for n in range(3):
            a(f"s_add_u32 m0, s{sLd}, {(c % 8)*CH + n*1024}")
            a(f"buffer_load_dwordx4 v{vW+n}, s[{sW}:{sW+3}], s{sWo+c} offen lds", tag=f"w{c}")
    a(f"s_cmp_ge_u32 s{sWave}, 6\ns_cbranch_scc1 L_k1_nodma")
    a.cond_begin()
    for c in range(8): wdma(c)
    a("s_branch L_k1_dmaj")
    a.cond_end()
    a.raw("L_k1_nodma:\ns_waitcnt vmcnt(0)\nL_k1_dmaj:")
    a(f"v_bfe_u32 v{vT}, v{vLane}, 2, 2\nv_lshrrev_b32 v{vT2}, 1, v{vG}\nv_lshl_add_u32 v{vT}, v{vT2}, 4, v{vT}\nv_and_b32 v{vT2}, 1, v{vG}\nv_lshl_add_u32 v{vT}, v{vT2}, 2, v{vT}")
    a(f"v_mul_u32_u24 v{vT}, 288, v{vT}\nv_and_b32 v{vT2}, 3, v{vLane}\nv_lshl_add_u32 v{vRdM}, v{vT2}, 3, v{vT}")
    a(f"v_mul_u32_u24 v{vT2}, 72, v{vT2}\nv_add3_u32 v{vRdR}, v{vT}, v{vT2}, 32")
    a(f"s_mov_b32 s{ONES}, 0x3f803f80")
    for k in range(4): a(f"v_mov_b32 v{vS+k}, 0")
    for r in range(72):
        a(f"v_dot2_f32_bf16 v{vS+(r&1)}, v{vX+r}, s{ONES}, v{vS+(r&1)}")
        a(f"v_dot2_f32_bf16 v{vS+2+(r&1)}, v{vX+r}, v{vX+r}, v{vS+2+(r&1)}")
    a(f"v_add_f32 v{vS}, v{vS}, v{vS+1}\nv_add_f32 v{vS+2}, v{vS+2}, v{vS+3}")
    xg_reduce_n(a, [vS, vS + 2], [vS + 1, vS + 3])
    a(f"s_mov_b32 s{sT}, {fhex(1.0/576)}\ns_mov_b32 s{sT2}, {fhex(1e-5)}")
    a(f"v_mul_f32 v{vS}, s{sT}, v{vS}\nv_mul_f32 v{vS+2}, s{sT}, v{vS+2}")
    a(f"v_fma_f32 v{vS+2}, -v{vS}, v{vS}, v{vS+2}\nv_max_f32 v{vS+2}, 0, v{vS+2}\nv_add_f32 v{vS+2}, s{sT2}, v{vS+2}")
    a(f"v_rsq_f32 v{vS+4}, v{vS+2}\nv_mul_f32 v{vS+6}, -v{vS}, v{vS+4}")
    for r0 in range(0, 72, 4):
        for r in range(r0, r0 + 4):
            t = vTmp + 2 * (r & 3)
            a(f"v_lshlrev_b32 v{t}, 16, v{vX+r}\nv_and_b32 v{t+1}, 0xffff0000, v{vX+r}")
        for r in range(r0, r0 + 4):
            t = vTmp + 2 * (r & 3)
            a(f"v_pk_fma_f32 {vr(t,2)}, {vr(t,2)}, {vr(vS+4,2)}, {vr(vS+6,2)} op_sel_hi:[1,0,0]")
        for r in range(r0, r0 + 4):
            t = vTmp + 2 * (r & 3)
            a(f"v_cvt_pk_bf16_f32 v{vX+r}, v{t}, v{t+1}")
    a(f"s_cmp_eq_u32 s{sRole}, 1\ns_cbranch_scc1 L_k1_q")
    cols = [0, 40, 72, 112, 144, 184, 216, 256]
    def reads(n):
        ksg, tile = divmod(n, 9)
        ks = ksg & 1; f = vFr + 4 * (n % 8)
        ad, col = (vRdM, cols[tile]) if tile < 8 else (vRdR, 0)
        return [f"ds_read_b64_tr_b16 {vr(f+2*hf,2)}, v{ad} offset:{ks*9216 + hf*2304 + col}" for hf in range(2)]
    def phi(a, src, t, eps):
        a(f"v_mul_f32 v{t}, s{sT}, v{src}\nv_exp_f32 v{t}, v{t} clamp\nv_max_f32 v{src}, 0, v{src}\nv_add_f32 v{src}, s{eps}, v{src}\nv_add_f32 v{src}, v{src}, v{t}")
    snapshot = None
    for role in (0, 1):
        if role == 1:
            a("L_k1_q:")
            a.replay_vm = True
            for c in range(8):
                for n in range(3): a.phantom_vm(f"w{c}")
        def newchunk(c):
            a.wait_vm(f"w{c}")
            a("s_barrier")
            if c:
                d = CH if c < 8 else -7 * CH
                a(f"v_add_u32 v{vRdM}, {hex(d & 0xffffffff)}, v{vRdM}\nv_add_u32 v{vRdR}, {hex(d & 0xffffffff)}, v{vRdR}")
            if c == 2:
                a(f"s_cmp_ge_u32 s{sWave}, 6\ns_cbranch_scc1 L_k1_sk{role}")
                a.cond_begin(); wdma(8); a.cond_end()
                a.raw(f"L_k1_sk{role}:")
        LA = 7
        def issue(n):
            if n >= 162: return
            if n % 18 == 0: newchunk(n // 18)
            for y in reads(n): a(y)
        for n in range(LA): issue(n)
        for n in range(162):
            ksg, t = divmod(n, 9)
            f = vr(vFr + 4 * (n % 8), 4); x = vr(vX + 4 * ksg, 4); ac = vr(vAcc + 4 * t, 4)
            A_, B_ = (x, f) if role == 0 else (f, x)
            a(f"v_mfma_f32_16x16x32_bf16 {ac}, {A_}, {B_}, {ac if ksg else 0}")
            issue(n + LA)
        a(f"s_mov_b32 s{sT}, {fhex(1.4426950408889634)}\ns_mov_b32 s{sT2}, {fhex(1e-6)}")
        if role == 1:
            a(f"s_lshl_b32 s61, s{sI}, 3\ns_add_u32 s61, s61, s{sWave}\ns_lshl_b32 s61, s61, 2\ns_add_u32 s61, s61, s{sJ}\ns_mul_i32 s61, s61, 4608")
            srd(a, sO, 6, WS_PQ, 4608, 61)
            pos = {0: 0, 8: 2, 1: 4, 2: 6, 3: 8, 4: 10, 5: 12, 6: 14, 7: 16}
            PK = vFr
            for t in (0, 8, 1, 2, 3, 4, 5, 6, 7):
                for r in range(4): a(f"v_mul_f32 v{vTmp+r}, s{sT}, v{vAcc+4*t+r}")
                for r in range(4): a(f"v_exp_f32 v{vTmp+r}, v{vTmp+r} clamp")
                for r in range(4): a(f"v_max_f32 v{vAcc+4*t+r}, 0, v{vAcc+4*t+r}")
                for r in range(4): a(f"v_add_f32 v{vAcc+4*t+r}, s{sT2}, v{vAcc+4*t+r}")
                for r in range(4): a(f"v_add_f32 v{vAcc+4*t+r}, v{vAcc+4*t+r}, v{vTmp+r}")
                a(f"v_cvt_pk_bf16_f32 v{PK+pos[t]}, v{vAcc+4*t}, v{vAcc+4*t+1}\nv_cvt_pk_bf16_f32 v{PK+pos[t]+1}, v{vAcc+4*t+2}, v{vAcc+4*t+3}")
                if pos[t] % 4 == 2:
                    a(f"buffer_store_dwordx4 {vr(PK+pos[t]-2,4)}, v{vL16}, s[{sO}:{sO+3}], 0 offen offset:{(pos[t]//4)*1024}")
            a(f"v_lshlrev_b32 v{vT}, 3, v{vLane}\ns_mov_b32 s61, 4096")
            a(f"buffer_store_dwordx2 {vr(PK+16,2)}, v{vT}, s[{sO}:{sO+3}], s61 offen")
            a("s_endpgm")
            continue
        srd(a, sDbg, 4, 0, 256)
        a(f"s_lshl_b32 s61, s{sJ}, 2\nv_mov_b32 v{vW}, s61")
        a(f"buffer_load_dword v{vW+1}, v{vW}, s[{sDbg}:{sDbg+3}], 0 offen sc0 sc1")
        a(f"s_lshr_b32 s61, s{sWave}, 1\ns_lshl_b32 s61, s61, 10\ns_and_b32 s62, s{sWave}, 1\ns_lshl_b32 s62, s62, 3\ns_add_u32 s61, s61, s62\ns_add_u32 s61, s61, {XB}")
        a(f"v_add_u32 v{vXo}, s61, v{vL16}")
        a(f"v_cmp_gt_u32 s[64:65], 8, v{vM}")
        for t in (4, 5, 6, 7, 0, 1, 2, 3, 8):
            ac = vAcc + 4 * t
            if t < 4 or t == 8:
                d = ac if t < 4 else vTmp + 4
                for r in range(4): a(f"v_mul_f32 v{vTmp+r}, s{sT}, v{ac+r}")
                for r in range(4): a(f"v_exp_f32 v{vTmp+r}, v{vTmp+r} clamp")
                for r in range(4): a(f"v_max_f32 v{d+r}, 0, v{ac+r}")
                for r in range(4): a(f"v_add_f32 v{d+r}, s{sT2}, v{d+r}")
                for r in range(4): a(f"v_add_f32 v{d+r}, v{d+r}, v{vTmp+r}")
                if t == 8:
                    for r in range(4): a(f"v_cndmask_b32 v{ac+r}, v{ac+r}, v{d+r}, s[64:65]")
            a(f"v_cvt_pk_bf16_f32 v{ac}, v{ac}, v{ac+1}\nv_cvt_pk_bf16_f32 v{ac+1}, v{ac+2}, v{ac+3}")
            a(f"ds_write_b64 v{vXo}, {vr(ac,2)} offset:{t*4096}")
        sHH, sCl = 61, 62
        a(f"s_and_b32 s{sHH}, s{sWave}, 3\ns_lshr_b32 s{sCl}, s{sWave}, 2")
        a(f"s_lshl_b32 s66, s{sHH}, 12\ns_add_u32 s66, s66, {XB}")
        a(f"s_cmp_eq_u32 s{sCl}, 0\ns_cselect_b32 s67, s66, {XB+8*4096}\ns_cselect_b32 s68, {XB+8*4096}, s66\ns_cselect_b64 s[70:71], -1, 0")
        a(f"v_add_u32 v{vRdM}, s66, v{vL16}\nv_add_u32 v{vRdR}, s67, v{vL16}\nv_add_u32 v{vT}, s68, v{vL16}")
        a(f"s_lshl_b32 s66, s{sJ}, 2\ns_add_u32 s66, s66, s{sHH}\ns_mul_i32 s66, s66, {KVH}")
        srd(a, sO, 6, WS_KV, KVH, 66)
        vA1, vA2, vA3 = vS, vS + 1, vS + 2
        a(f"v_lshrrev_b32 v{vTmp}, 1, v{vM}\nv_cmp_eq_u32 s[72:73], s{sHH}, v{vTmp}\nv_and_b32 v{vTmp+1}, 1, v{vM}\nv_lshlrev_b32 v{vTmp+1}, 2, v{vTmp+1}")
        a(f"v_mov_b32 v{vTmp+7}, {OOB}")
        a(f"v_cndmask_b32 v{vTmp+1}, v{vTmp+7}, v{vTmp+1}, s[72:73]")
        a(f"v_lshlrev_b32 v{vTmp+2}, 2, v{vM}")
        a(f"v_lshl_add_u32 v{vTmp+3}, v{vG}, 8, v{vTmp+2}\nv_lshl_add_u32 v{vTmp+4}, v{vG}, 5, v{vTmp+1}\nv_add_u32 v{vTmp+4}, {KV_RM}, v{vTmp+4}")
        a(f"v_cndmask_b32 v{vA1}, v{vTmp+4}, v{vTmp+3}, s[70:71]")
        a(f"s_cmp_eq_u32 s{sCl}, 0\ns_cselect_b32 s74, 64, 8\ns_cselect_b32 s77, 8, 64\ns_cselect_b32 s78, {KV_AR-KV_AM}, 0\ns_add_u32 s78, s78, {KV_AM}\ns_lshl_b32 s75, s74, 1\ns_add_u32 s76, s75, s74")
        a(f"v_cndmask_b32 v{vTmp+3}, v{vTmp+2}, v{vTmp+1}, s[70:71]\nv_add_u32 v{vTmp+3}, s78, v{vTmp+3}")
        a(f"s_lshr_b32 s79, s{sHH}, 1\ns_add_u32 s79, s79, 2\nv_cmp_eq_u32 s[72:73], s79, v{vG}\nv_cmp_eq_u32 vcc, 0, v{vG}")
        a(f"v_add_u32 v{vTmp+4}, s77, v{vTmp+3}\nv_add_u32 v{vTmp+5}, s77, v{vTmp+4}")
        a(f"v_cndmask_b32 v{vA2}, v{vTmp+7}, v{vTmp+3}, vcc\nv_cndmask_b32 v{vA2}, v{vA2}, v{vTmp+4}, s[72:73]\nv_cndmask_b32 v{vA3}, v{vTmp+7}, v{vTmp+5}, s[72:73]")
        a(f"s_and_b32 s79, s{sHH}, 1\ns_cmp_eq_u32 s79, 1\ns_cselect_b64 s[80:81], -1, 0")
        a(f"v_mov_b32 v{vS+3}, s{ONES}")
        a("s_waitcnt lgkmcnt(0)\ns_barrier")
        fV, fB1, fB2, fR = vFr, vFr + 16, vFr + 32, vFr + 48
        for k in range(4):
            a(f"ds_read_b128 {vr(fR+4*k,4)}, v{vL16} offset:{XB+8*4096+k*1024}")
        for k in range(4):
            a(f"ds_read_b128 {vr(fV+4*k,4)}, v{vRdM} offset:{4*4096+k*1024}")
            a(f"ds_read_b128 {vr(fB1+4*k,4)}, v{vRdR} offset:{k*1024}")
            a(f"ds_read_b128 {vr(fB2+4*k,4)}, v{vT} offset:{k*1024}")
        for r in range(16): a(f"v_cndmask_b32 v{fR+r}, v{fR+r}, v{vS+3}, s[64:65]")
        D1, D2 = vAcc, vAcc + 4
        for k in range(4):
            a(f"v_mfma_f32_16x16x32_bf16 {vr(D1,4)}, {vr(fV+4*k,4)}, {vr(fB1+4*k,4)}, {vr(D1,4) if k else 0}")
            a(f"v_mfma_f32_16x16x32_bf16 {vr(D2,4)}, {vr(fR+4*k,4)}, {vr(fB2+4*k,4)}, {vr(D2,4) if k else 0}")
        a("s_waitcnt vmcnt(0)")
        a.raw("L_k1_poll:")
        a(f"v_readfirstlane_b32 s79, v{vW+1}\ns_cmp_lg_u32 s79, 0\ns_cbranch_scc1 L_k1_go")
        a(f"s_sleep 2\nbuffer_load_dword v{vW+1}, v{vW}, s[{sDbg}:{sDbg+3}], 0 offen sc0 sc1\ns_waitcnt vmcnt(0)\ns_branch L_k1_poll")
        a.raw("L_k1_go:")
        a("s_nop 7")
        a(f"v_cndmask_b32 v{D2}, v{D2}, v{D2+2}, s[80:81]\nv_cndmask_b32 v{D2+1}, v{D2+1}, v{D2+3}, s[80:81]")
        for r in range(4):
            a(f"buffer_atomic_add_f32 v{D1+r}, v{vA1}, s[{sO}:{sO+3}], {'0' if r == 0 else 's'+str(73+r)} offen")
        a(f"buffer_atomic_add_f32 v{D2}, v{vA2}, s[{sO}:{sO+3}], 0 offen")
        a(f"buffer_atomic_add_f32 v{D2+1}, v{vA3}, s[{sO}:{sO+3}], 0 offen")
        a("s_endpgm")
        a.reset()
    a("L_k1_end:\ns_endpgm")
    return header(name) + a.text(), descriptor(name, 256, 256, 96)
```

```python
from common import *
K3_LDS = 4 * 3 * 5 * 1024
def gen_k3(name):
    a = Prog()
    V = Regs("v", 1, 256)
    vLane = V.alloc(); vM = V.alloc(); vG = V.alloc(); vL16 = V.alloc(); vT = V.alloc(); vT2 = V.alloc()
    vMM = V.alloc(); vRM = V.alloc(); vAM = V.alloc(4); vAR = V.alloc(4); vXo = V.alloc(); vX2 = V.alloc(); vL8 = V.alloc()
    vEps = V.alloc(4, 4)
    vRaw = V.alloc(48, 4)
    vKA = V.alloc(64, 4)
    vS1 = V.alloc(16, 4)
    vO = V.alloc(40, 4)
    vRr = V.alloc(4, 2)
    vXr = V.alloc(10, 4)
    vTmp = V.alloc(8, 4)
    vAc2 = V.alloc(20, 4)
    def PQ(mt, r, n): return vr(24 * mt + r, n, "a")
    def WO(v, t): return vr(96 + 4 * (5 * v + t), 4, "a")
    def AC(mt, t):
        return (vr(196 + 20 * mt + 4 * t, 4, "a") if mt < 3 else vr(vAc2 + 4 * t, 4))
    sKV, sPQ, sWO, sX, sH, sST = 8, 12, 16, 20, 24, 28
    sWave, sJ, sI, sT, sT2 = 32, 33, 34, 35, 36
    sG = 40
    a("s_cmp_ge_u32 s2, 256\ns_cbranch_scc1 L_k3_end")
    a(f"s_load_dwordx2 s[4:5], s[0:1], {KA_WS}")
    a(f"s_load_dwordx2 s[6:7], s[0:1], {KA_X}")
    a(f"v_lshrrev_b32 v{vT}, 6, v0\nv_readfirstlane_b32 s{sWave}, v{vT}")
    a(f"s_and_b32 s{sJ}, s2, 7\ns_lshr_b32 s{sI}, s2, 3")
    a(f"v_and_b32 v{vLane}, 63, v0\nv_and_b32 v{vM}, 15, v0\nv_bfe_u32 v{vG}, v0, 4, 2\nv_lshlrev_b32 v{vL16}, 4, v{vLane}\nv_lshlrev_b32 v{vL8}, 3, v{vLane}")
    a(f"v_lshlrev_b32 v{vMM}, 6, v{vM}\nv_lshl_add_u32 v{vMM}, v{vG}, 4, v{vMM}")
    a(f"v_lshlrev_b32 v{vRM}, 3, v{vM}\nv_add_u32 v{vRM}, {KV_RM}, v{vRM}")
    a(f"v_mov_b32 v{vTmp}, {OOB}\nv_and_b32 v{vT}, 3, v{vM}\nv_lshrrev_b32 v{vT2}, 2, v{vM}")
    a(f"v_lshlrev_b32 v{vTmp+1}, 6, v{vT}\nv_lshl_add_u32 v{vTmp+1}, v{vG}, 4, v{vTmp+1}\nv_add_u32 v{vTmp+1}, {KV_AM}, v{vTmp+1}")
    a(f"v_lshlrev_b32 v{vTmp+2}, 3, v{vT}\nv_add_u32 v{vTmp+2}, {KV_AR}, v{vTmp+2}")
    a(f"v_cmp_eq_u32 s[48:49], 0, v{vT}\nv_cmp_ne_u32 s[50:51], 3, v{vT}")
    for q in range(4):
        a(f"v_cmp_eq_u32 vcc, {q}, v{vT2}\nv_cmp_eq_u32 s[{sG+2*q}:{sG+2*q+1}], {q}, v{vG}")
        a("s_and_b64 vcc, vcc, s[50:51]\ns_or_b64 vcc, vcc, s[48:49]")
        a(f"v_cndmask_b32 v{vAM+q}, v{vTmp}, v{vTmp+1}, vcc\nv_cndmask_b32 v{vAR+q}, v{vTmp}, v{vTmp+2}, vcc")
    a("s_waitcnt lgkmcnt(0)")
    a(f"s_mul_i32 s{sT}, s{sWave}, {8*KVH}"); srd(a, sKV, 4, WS_KV, 8 * KVH, sT)
    a(f"s_lshl_b32 s{sT}, s{sI}, 4\ns_add_u32 s{sT}, s{sT}, s{sWave}\ns_mul_i32 s{sT}, s{sT}, 4608"); srd(a, sPQ, 4, WS_PQ, 13 * 4608, sT)
    a(f"s_lshl_b32 s{sT}, s{sJ}, 2\ns_add_u32 s{sT}, s{sT}, s{sWave}\ns_mul_i32 s{sT}, s{sT}, {25*1024}"); srd(a, sWO, 4, WS_WO, 25 * 1024, sT)
    def kvload(h):
        r = vRaw + 12 * (h % 4)
        a(f"s_mov_b32 s{sT}, {h*KVH}")
        a(f"buffer_load_dwordx4 {vr(r,4)}, v{vMM}, s[{sKV}:{sKV+3}], s{sT} offen")
        a(f"buffer_load_dwordx4 {vr(r+4,4)}, v{vAM+h%4}, s[{sKV}:{sKV+3}], s{sT} offen")
        a(f"buffer_load_dwordx2 {vr(r+8,2)}, v{vRM}, s[{sKV}:{sKV+3}], s{sT} offen")
        a(f"buffer_load_dwordx2 {vr(r+10,2)}, v{vAR+h%4}, s[{sKV}:{sKV+3}], s{sT} offen")
    def pqload(mt):
        a(f"s_mov_b32 s{sT}, {mt*4*4608}")
        for pl, r in enumerate((0, 4, 10, 16)):
            a(f"buffer_load_dwordx4 {PQ(mt,r,4)}, v{vL16}, s[{sPQ}:{sPQ+3}], s{sT} offen offset:{pl*1024}")
        a(f"s_mov_b32 s{sT}, {mt*4*4608+4096}")
        a(f"buffer_load_dwordx2 {PQ(mt,22,2)}, v{vL8}, s[{sPQ}:{sPQ+3}], s{sT} offen")
    def kvbuild(h):
        r = vRaw + 12 * (h % 4); odd = h & 1; p8 = h >> 1
        for k in range(2):
            f = vKA + 8 * h + 4 * k
            mo, ro = (0, 2) if not odd else (2, 0)
            a(f"v_cvt_pk_bf16_f32 v{f+mo}, v{r+4*k}, v{r+4*k+1}\nv_cvt_pk_bf16_f32 v{f+mo+1}, v{r+4*k+2}, v{r+4*k+3}")
            a(f"v_cvt_pk_bf16_f32 v{vT}, v{r+8+2*k}, v{r+9+2*k}\nv_mov_b32 v{f+ro+1-odd}, 0")
            a(f"v_cndmask_b32 v{f+ro+odd}, 0, v{vT}, s[{sG+2*p8}:{sG+2*p8+1}]")
    for h in range(4): kvload(h)
    pqload(0)
    srd(a, sX, 6, 0, S * D * 2)
    srd(a, sH, 4, WS_H, SZ_H)
    srd(a, sST, 4, WS_ST, SZ_ST)
    a(f"s_lshl_b32 s{sT}, s{sI}, 6\ns_lshl_b32 s{sT2}, s{sWave}, 4\ns_add_u32 s{sT}, s{sT}, s{sT2}\nv_add_u32 v{vT}, s{sT}, v{vM}")
    a(f"v_mul_u32_u24 v{vXo}, 1152, v{vT}\ns_mul_i32 s{sT2}, s{sJ}, 144\nv_add_u32 v{vXo}, s{sT2}, v{vXo}")
    a(f"v_lshl_add_u32 v{vX2}, v{vG}, 3, v{vXo}\nv_add_u32 v{vX2}, 128, v{vX2}\nv_lshl_add_u32 v{vXo}, v{vG}, 4, v{vXo}")
    a(f"v_cmp_gt_u32 s[52:53], 2, v{vG}\nv_cndmask_b32 v{vX2}, v{vTmp}, v{vX2}, s[52:53]")
    vSTo = vRM
    a(f"v_mov_b32 v{vEps}, {fhex(1e-6)}\nv_mov_b32 v{vEps+1}, 0\nv_mov_b32 v{vEps+2}, 0\nv_mov_b32 v{vEps+3}, 0")
    for k in range(2): a(f"v_mov_b32 v{vO+20*k+18}, 0\nv_mov_b32 v{vO+20*k+19}, 0")
    a(f"v_lshlrev_b32 v{vTmp+3}, 6, v{vT}\ns_lshl_b32 s{sT2}, s{sJ}, 3\nv_add_u32 v{vTmp+3}, s{sT2}, v{vTmp+3}\nv_cndmask_b32 v{vT2}, v{vTmp}, v{vTmp+3}, s[{sG}:{sG+1}]")
    for h in range(4):
        kvbuild(h); kvload(h + 4)
    for mt in range(1, 4): pqload(mt)
    for k in range(25):
        if k % 4 == 0: a(f"s_mov_b32 s{sT}, {k*1024}")
        a(f"buffer_load_dwordx4 {WO(k//5,k%5)}, v{vL16}, s[{sWO}:{sWO+3}], s{sT} offen offset:{(k%4)*1024}")
        if k == 8:
            for h in range(4, 8): kvbuild(h)
    a(f"buffer_load_dwordx4 {vr(vXr,4)}, v{vXo}, s[{sX}:{sX+3}], 0 offen")
    a(f"buffer_load_dwordx4 {vr(vXr+4,4)}, v{vXo}, s[{sX}:{sX+3}], 0 offen offset:64")
    a(f"buffer_load_dwordx2 {vr(vXr+8,2)}, v{vX2}, s[{sX}:{sX+3}], 0 offen")
    boff = [0, 2, 6, 8, 12, 14, 18, 20]
    def s1_mfma(mt, h):
        ac = vS1 + 8 * (h & 1)
        return [f"v_mfma_f32_16x16x32_bf16 {vr(ac+4,4)}, {vr(vKA+8*h+4,4)}, {PQ(mt,boff[h],4)}, {vr(vEps,4)}",
                f"v_mfma_f32_16x16x32_bf16 {vr(ac,4)}, {vr(vKA+8*h,4)}, {PQ(mt,boff[h],4)}, 0"]
    def s1_valu(mt, h):
        ac = vS1 + 8 * (h & 1); o = vO + 20 * (mt & 1); rr = vRr + 2 * (h >> 2)
        L = [f"v_rcp_f32 v{ac+4}, v{ac+4}"]
        if h % 4 == 0: L += [f"v_mul_f32 v{rr}, v{ac+5}, v{ac+4}", f"v_mul_f32 v{rr+1}, v{ac+6}, v{ac+4}"]
        else: L += [f"v_fma_f32 v{rr}, v{ac+5}, v{ac+4}, v{rr}", f"v_fma_f32 v{rr+1}, v{ac+6}, v{ac+4}, v{rr+1}"]
        for r in range(4): L.append(f"v_mul_f32 v{ac+r}, v{ac+r}, v{ac+4}")
        d = o + 4 * (h >> 1) + 2 * (h & 1)
        L += [f"v_cvt_pk_bf16_f32 v{d}, v{ac}, v{ac+1}", f"v_cvt_pk_bf16_f32 v{d+1}, v{ac+2}, v{ac+3}"]
        if h % 4 == 3: L.append(f"v_cvt_pk_bf16_f32 v{o+16+(h>>2)}, v{rr}, v{rr+1}")
        return L
    def s2_mfma(mt):
        o = vO + 20 * (mt & 1)
        return [f"v_mfma_f32_16x16x32_bf16 {AC(mt,t)}, {WO(v,t)}, {vr(o+4*v,4)}, {AC(mt,t) if v else 0}" for v in range(5) for t in range(5)]
    def s1(mt, extra):
        for d in (8, 14, 20):
            a(f"v_accvgpr_mov_b32 a{24*mt+d}, a{24*mt+2}\nv_accvgpr_mov_b32 a{24*mt+d+1}, a{24*mt+3}")
        ei = 0
        for x in s1_mfma(mt, 0): a(x)
        for h in range(8):
            if h < 7:
                for x in s1_mfma(mt, h + 1): a(x)
            want = (len(extra) * (h + 1) + 7) // 8
            ex = extra[ei:want]; ei = want
            va = s1_valu(mt, h)
            if ex:
                a(ex[0]);
                for x in interleave(va, ex[1:], 1): a(x)
            else:
                for x in va: a(x)
    s1(0, [])
    for mt in range(1, 4): s1(mt, s2_mfma(mt - 1))
    for x in s2_mfma(3): a(x)
    own = vRaw
    for w in range(4):
        a(f"s_cmp_lg_u32 s{sWave}, {w}\ns_cbranch_scc1 L_k3_w{w}")
        a.cond_begin()
        for mt in range(4):
            for t in range(5):
                if mt == w:
                    if mt < 3:
                        for r in range(4): a(f"v_accvgpr_read_b32 v{own+4*t+r}, a{196+20*mt+4*t+r}")
                    else:
                        for r in range(4): a(f"v_mov_b32 v{own+4*t+r}, v{vAc2+4*t+r}")
                else:
                    slot = w - (1 if w > mt else 0)
                    a(f"ds_write_b128 v{vL16}, {AC(mt,t)} offset:{((mt*3+slot)*5+t)*1024}")
        a.cond_end()
        a.raw(f"L_k3_w{w}:")
    a(f"s_mul_i32 s{sT}, s{sWave}, {15*1024}\nv_add_u32 v{vL8}, s{sT}, v{vL16}")
    a("s_waitcnt lgkmcnt(0)\ns_barrier")
    rb = vKA
    for t in range(5):
        for sl in range(3):
            a(f"ds_read_b128 {vr(rb+4*(3*t+sl),4)}, v{vL8} offset:{(sl*5+t)*1024}")
    for t in range(5):
        for sl in range(3):
            for r in range(4): a(f"v_add_f32 v{own+4*t+r}, v{own+4*t+r}, v{rb+4*(3*t+sl)+r}")
    hp = vS1
    for t in range(5):
        for k in range(2):
            xd = vXr + 2 * t + k
            a(f"v_lshlrev_b32 v{vTmp+4}, 16, v{xd}\nv_and_b32 v{vTmp+5}, 0xffff0000, v{xd}")
            a(f"v_add_f32 v{own+4*t+2*k}, v{own+4*t+2*k}, v{vTmp+4}\nv_add_f32 v{own+4*t+2*k+1}, v{own+4*t+2*k+1}, v{vTmp+5}")
            a(f"v_cvt_pk_bf16_f32 v{hp+2*t+k}, v{own+4*t+2*k}, v{own+4*t+2*k+1}")
    a(f"v_cndmask_b32 v{hp+8}, 0, v{hp+8}, s[52:53]\nv_cndmask_b32 v{hp+9}, 0, v{hp+9}, s[52:53]")
    a(f"buffer_store_dwordx4 {vr(hp,4)}, v{vXo}, s[{sH}:{sH+3}], 0 offen")
    a(f"buffer_store_dwordx4 {vr(hp+4,4)}, v{vXo}, s[{sH}:{sH+3}], 0 offen offset:64")
    a(f"buffer_store_dwordx2 {vr(hp+8,2)}, v{vX2}, s[{sH}:{sH+3}], 0 offen")
    a(f"s_mov_b32 s{sT}, 0x3f803f80\nv_mov_b32 v{vTmp}, 0\nv_mov_b32 v{vTmp+1}, 0")
    for r in range(10):
        a(f"v_dot2_f32_bf16 v{vTmp}, v{hp+r}, s{sT}, v{vTmp}\nv_dot2_f32_bf16 v{vTmp+1}, v{hp+r}, v{hp+r}, v{vTmp+1}")
    xg_reduce_n(a, [vTmp, vTmp + 1], [vTmp + 2, vTmp + 3])
    a(f"buffer_store_dwordx2 {vr(vTmp,2)}, v{vT2}, s[{sST}:{sST+3}], 0 offen")
    a("L_k3_end:\ns_endpgm")
    return header(name) + a.text(), descriptor(name, 512, 256, 64)
```

```python
from common import *
HB, CB = 0, 73728
K4_LDS = CB + 4608
def gen_k4(name, st_flags="", opts=None):
    opts = opts or {}
    a = Prog()
    V = Regs("v", 1, 256)
    vL = V.alloc(); vL1 = V.alloc(); vH = V.alloc(); vHWe = V.alloc(); vHWo = V.alloc(); vCB = V.alloc(); vP = V.alloc()
    vT0 = V.alloc(); vT1 = V.alloc()
    vRS = V.alloc(4, 4); vNM = V.alloc(4, 4)
    vCS = V.alloc(8, 4)
    vTMP = V.alloc(8, 4)
    vPK = V.alloc(16, 4)
    vACC = V.alloc(32, 4)
    vA = V.alloc(72, 4)
    vB = V.alloc(32, 4)
    vX = vA
    vPRO = V.alloc(32, 4)
    def B(idx): return f"a[{4*idx}:{4*idx+3}]" if idx < 64 else vr(vB + 4 * (idx - 64), 4)
    def Breadop(idx, tag=None):
        return f"ds_read_b128 {B(idx)}, v{vL} offset:{idx*1024}" if idx < 64 else f"ds_read_b128 {B(idx)}, v{vL1} offset:{(idx-64)*1024}"
    sW, sH, sST, sCS, sB1, sP = 8, 12, 16, 20, 24, 28
    sWave, sJ, sI, sStream, sPo, sCnt, sT, sT2, sPs = 32, 33, 34, 35, 36, 37, 38, 39, 40

    a("s_cmp_ge_u32 s2, 256\ns_cbranch_scc1 L_k4_end")
    a(f"s_load_dwordx2 s[4:5], s[0:1], {KA_WS}")
    a(f"s_load_dwordx2 s[6:7], s[0:1], {KA_B1}")
    a(f"v_lshrrev_b32 v{vT0}, 6, v0")
    a(f"v_readfirstlane_b32 s{sWave}, v{vT0}")
    a(f"s_and_b32 s{sJ}, s2, 7\ns_lshr_b32 s{sI}, s2, 3")
    a(f"v_and_b32 v{vT1}, 63, v0\nv_lshlrev_b32 v{vL}, 4, v{vT1}\nv_add_u32 v{vL1}, 0x10000, v{vL}")
    a(f"v_and_b32 v{vTMP}, 15, v0\nv_bfe_u32 v{vTMP+1}, v0, 4, 2")
    a(f"s_lshl_b32 s{sT}, s{sWave}, 4\nv_add_u32 v{vH}, s{sT}, v{vTMP}\nv_mul_u32_u24 v{vH}, 1152, v{vH}")
    a(f"v_lshl_add_u32 v{vH}, v{vTMP+1}, 4, v{vH}")
    a(f"v_lshlrev_b32 v{vTMP+2}, 6, v{vTMP}\nv_lshl_add_u32 v{vTMP+2}, v{vTMP+1}, 4, v{vTMP+2}")
    a(f"s_mul_i32 s{sT}, s{sJ}, 576\ns_mul_i32 s{sT2}, s{sWave}, 144\ns_add_u32 s{sT}, s{sT}, s{sT2}")
    a(f"v_lshlrev_b32 v{vTMP+3}, 2, v{vT1}\nv_add_u32 v{vTMP+3}, s{sT}, v{vTMP+3}")
    a(f"v_lshlrev_b32 v{vTMP+4}, 1, v{vTMP+3}\nv_lshlrev_b32 v{vTMP+3}, 2, v{vTMP+3}")
    a("s_waitcnt lgkmcnt(0)")
    a(f"s_lshl_b32 s{sT}, s{sI}, 12"); srd(a, sST, 4, WS_ST, 4096, sT)
    srd(a, sCS, 4, WS_CS, SZ_CS)
    srd(a, sB1, 6, 0, F * 2)
    a(f"s_mul_i32 s{sT}, s{sI}, {64*1152}"); srd(a, sH, 4, WS_H, 64 * 1152, sT)
    a(f"s_lshl_b32 s{sT}, s{sJ}, 2\ns_add_u32 s{sT}, s{sT}, s{sWave}\ns_mul_i32 s{sT}, s{sT}, {324*1024}")
    srd(a, sW, 4, WS_W, 324 * 1024, sT)
    for mt in range(4):
        a(f"buffer_load_dwordx4 {vr(vPRO+4*mt,4)}, v{vTMP+2}, s[{sST}:{sST+3}], 0 offen offset:{mt*1024}")
    for p in range(3):
        a(f"s_mov_b32 s{sT}, {p*F*4}")
        a(f"buffer_load_dwordx4 {vr(vPRO+16+4*p,4)}, v{vTMP+3}, s[{sCS}:{sCS+3}], s{sT} offen")
    a(f"buffer_load_dwordx2 {vr(vPRO+28,2)}, v{vTMP+4}, s[{sB1}:{sB1+3}], 0 offen")
    a(f"s_lshl_b32 s{sT}, s{sWave}, 10")
    for s in range(18):
        a(f"s_add_u32 m0, s{sT}, {HB + s*(4096-64)}")
        a(f"buffer_load_dwordx4 v{vH}, s[{sH}:{sH+3}], 0 offen offset:{s*64} lds", tag="hdma")
    a(f"s_mov_b32 s{sStream}, 0")
    def aload(q):
        L = [(f"buffer_load_dwordx4 {vr(vA+12*q+4*ss,4)}, v{vL}, s[{sW}:{sW+3}], s{sStream} offen offset:{ss*1024}", f"A{q}") for ss in range(3)]
        L.append(f"s_add_u32 s{sStream}, s{sStream}, 3072")
        return L
    def put(x):
        if isinstance(x, tuple): a(x[0], tag=x[1])
        else: a(x)
    for q in range(5):
        for x in aload(q): put(x)
    a(f"s_mul_i32 s{sT}, s{sJ}, {SZ_P//8}\ns_mul_i32 s{sT2}, s{sI}, {72*1024}\ns_add_u32 s{sT}, s{sT}, s{sT2}")
    srd(a, sP, 4, WS_P, 72 * 1024, sT)
    a(f"s_mul_i32 s{sT}, s{sWave}, 9")
    a(f"s_add_u32 s{sT2}, s{sT}, 1\ns_lshr_b32 s{sPo}, s{sT2}, 1\ns_lshl_b32 s{sPo}, s{sPo}, 12")
    a(f"s_lshr_b32 s{sPs}, s{sWave}, 1\ns_mul_i32 s{sPs}, s{sPs}, 9\ns_add_u32 s{sPs}, s{sPs}, 4\ns_lshl_b32 s{sPs}, s{sPs}, 12")
    a(f"s_and_b32 s{sCnt}, s{sWave}, 1\ns_lshl_b32 s{sCnt}, s{sCnt}, 3\ns_add_u32 s{sPs}, s{sPs}, s{sCnt}")
    a(f"s_lshr_b32 s{sCnt}, s{sT}, 1\ns_lshl_b32 s{sCnt}, s{sCnt}, 12\ns_and_b32 s{sT}, s{sT}, 1\ns_lshl_b32 s{sT}, s{sT}, 3\ns_add_u32 s{sCnt}, s{sCnt}, s{sT}")
    a(f"v_add_u32 v{vHWe}, s{sCnt}, v{vL}")
    a(f"s_lshr_b32 s{sCnt}, s{sT2}, 1\ns_lshl_b32 s{sCnt}, s{sCnt}, 12\ns_and_b32 s{sT2}, s{sT2}, 1\ns_lshl_b32 s{sT2}, s{sT2}, 3\ns_add_u32 s{sCnt}, s{sCnt}, s{sT2}")
    a(f"v_add_u32 v{vHWo}, s{sCnt}, v{vL}")
    a(f"s_mul_i32 s{sT}, s{sWave}, 1152\ns_add_u32 s{sT}, s{sT}, {CB}")
    a(f"v_lshlrev_b32 v{vCB}, 5, v{vTMP+1}\nv_add_u32 v{vCB}, s{sT}, v{vCB}")
    a(f"v_lshlrev_b32 v{vTMP+5}, 5, v{vT1}\nv_add_u32 v{vTMP+5}, s{sT}, v{vTMP+5}")
    a(f"s_mov_b32 s{sT}, {hex(f2u(1.0/576))}\ns_mov_b32 s{sT2}, {hex(f2u(1e-5))}")
    for mt in range(4):
        b = vPRO + 4 * mt
        a(f"v_add_f32 v{b}, v{b}, v{b+2}\nv_add_f32 v{b+1}, v{b+1}, v{b+3}")
    xg_reduce_n(a, [vPRO + 4 * mt + k for mt in range(4) for k in range(2)], [vPRO + 4 * mt + 2 + k for mt in range(4) for k in range(2)])
    for mt in range(4):
        b = vPRO + 4 * mt
        a(f"v_mul_f32 v{b}, s{sT}, v{b}\nv_mul_f32 v{b+1}, s{sT}, v{b+1}")
        a(f"v_fma_f32 v{b+1}, -v{b}, v{b}, v{b+1}\nv_max_f32 v{b+1}, 0, v{b+1}\nv_add_f32 v{b+1}, s{sT2}, v{b+1}")
        a(f"v_rsq_f32 v{vRS+mt}, v{b+1}")
    for mt in range(4):
        a(f"v_mul_f32 v{vNM+mt}, -v{vPRO+4*mt}, v{vRS+mt}")
    c = vPRO + 16
    for r in range(4):
        a(f"v_add_f32 v{c+r}, v{c+r}, v{c+4+r}\nv_add_f32 v{c+r}, v{c+r}, v{c+8+r}")
    a(f"v_lshlrev_b32 v{c+4}, 16, v{c+12}\nv_and_b32 v{c+5}, 0xffff0000, v{c+12}\nv_lshlrev_b32 v{c+6}, 16, v{c+13}\nv_and_b32 v{c+7}, 0xffff0000, v{c+13}")
    a(f"v_cmp_gt_u32 vcc, 36, v{vT1}\ns_and_saveexec_b64 s[42:43], vcc")
    a(f"ds_write_b128 v{vTMP+5}, {vr(c,4)}\nds_write_b128 v{vTMP+5}, {vr(c+4,4)} offset:16")
    a("s_mov_b64 exec, s[42:43]")
    a("s_waitcnt lgkmcnt(0)")
    a.wait_vm("hdma")
    a("s_barrier")

    def mfmas(X):
        L = []
        for q in range(6):
            for mt in range(4):
                for ss in range(3):
                    s = 3 * q + ss
                    acc = vr(vACC + 16 * X + 4 * mt, 4)
                    L.append(f"v_mfma_f32_16x16x32_bf16 {acc}, {vr(vA+12*q+4*ss,4)}, {B(4*s+mt)}, {acc if s else 0}")
        return L
    def breads(q): return [Breadop(4 * (3 * q + ss) + mt) for mt in range(4) for ss in range(3)]
    def emit_tile(X, fill, first=False):
        M = mfmas(X)
        nf = len(fill); fi = 0
        for q in range(6):
            grp = M[12 * q:12 * q + 12]
            own = aload((q - 1) % 6)
            if first and q < 5: own = interleave(breads(q + 1), own, 0)
            lo = 4 if q == 0 else 0
            want = (nf * (12 * (q + 1) - 4) + 67) // 68
            ex = fill[fi:want]; fi = want
            if q == 0:
                seq = interleave(grp[:4], own[:] if not first else own[:5], 0) + interleave(grp[4:], (own[5:] if first else []) + ex, 0)
            else:
                seq = interleave(grp, merge(own, ex), 0)
            a.wait_vm(f"A{q}")
            for x in seq: put(x)
        assert fi >= nf
    def merge(x, y):
        if len(x) < len(y): x, y = y, x
        return interleave(x, y, 0) if x else []
    def cbread(off): return [f"ds_read_b128 {vr(vCS,4)}, v{vCB} offset:{off}", f"ds_read_b128 {vr(vCS+4,4)}, v{vCB} offset:{off+16}"]
    def epi1(X, vHW, cboff):
        L = []
        for mt in range(4):
            ac = vACC + 16 * X + 4 * mt; t = vTMP + 4 * (mt & 1)
            for r in range(4): L.append(f"v_fma_f32 v{t+r}, v{vNM+mt}, v{vCS+r}, v{vCS+4+r}")
            if mt == 3 and cboff is not None: L += cbread(cboff)
            for r in range(4): L.append(f"v_fma_f32 v{t+r}, v{ac+r}, v{vRS+mt}, v{t+r}")
            for r in range(4): L.append(f"v_mul_f32 v{t+r}, v{t+r}, abs(v{t+r})")
            L.append(f"v_cvt_pk_bf16_f32 v{t}, v{t}, v{t+1}"); L.append(f"v_cvt_pk_bf16_f32 v{t+1}, v{t+2}, v{t+3}")
            L.append(f"v_pk_max_i16 v{t}, v{t}, 0"); L.append(f"v_pk_max_i16 v{t+1}, v{t+1}, 0")
            L.append(f"ds_write_b64 v{vHW}, {vr(t,2)} offset:{mt*1024}")
        return L
    def epi2(X, odd):
        L = []
        for mt in range(4):
            ac = vACC + 16 * X + 4 * mt; p = vPK + 4 * mt + 2 * odd
            L.append(f"v_cvt_pk_bf16_f32 v{p}, v{ac}, v{ac+1}"); L.append(f"v_cvt_pk_bf16_f32 v{p+1}, v{ac+2}, v{ac+3}")
            if odd: L.append(f"buffer_store_dwordx4 {vr(vPK+4*mt,4)}, v{vL}, s[{sP}:{sP+3}], s{sPo} offen offset:{mt*1024}{st_flags}")
        if odd: L.append(f"s_add_u32 s{sPo}, s{sPo}, 4096")
        return L
    for x in breads(0): a(x)
    for x in cbread(0): a(x)
    emit_tile(0, [], first=True)
    a("s_waitcnt lgkmcnt(0)\ns_barrier")
    a(f"s_mov_b32 s{sCnt}, 0")
    def body1(it):
        emit_tile(1, epi1(0, vHWe, 128) + [f"v_add_u32 v{vHWe}, 0x1000, v{vHWe}"])
        emit_tile(0, epi1(1, vHWo, 256) + [f"v_add_u32 v{vHWo}, 0x1000, v{vHWo}", f"v_add_u32 v{vCB}, 0x100, v{vCB}"])
    a.loop("L_k4_p1", 4, body1, f"s_add_u32 s{sCnt}, s{sCnt}, 1\ns_cmp_lt_u32 s{sCnt}, 4\ns_cbranch_scc1 L_k4_p1")
    for x in epi1(0, vHWe, None): a(x)
    a("s_waitcnt lgkmcnt(0)\ns_barrier")
    for x in breads(0): a(x)
    emit_tile(0, [], first=True)
    a(f"s_mov_b32 s{sCnt}, 0")
    def body2(it):
        emit_tile(1, epi2(0, 0))
        emit_tile(0, epi2(1, 1))
    a.loop("L_k4_p2", 4, body2, f"s_add_u32 s{sCnt}, s{sCnt}, 1\ns_cmp_lt_u32 s{sCnt}, 4\ns_cbranch_scc1 L_k4_p2")
    for mt in range(4):
        ac = vACC + 4 * mt; p = vPK + 4 * mt
        a(f"v_cvt_pk_bf16_f32 v{p}, v{ac}, v{ac+1}\nv_cvt_pk_bf16_f32 v{p+1}, v{ac+2}, v{ac+3}")
        a(f"buffer_store_dwordx2 {vr(p,2)}, v{vL}, s[{sP}:{sP+3}], s{sPs} offen offset:{mt*1024}{st_flags}")
    a("L_k4_end:\ns_endpgm")
    return header(name) + a.text(), descriptor(name, 512, 256, 64)
```

```python
from common import *
def gen_k5(name):
    a = Prog()
    a("s_cmp_ge_u32 s2, 576\ns_cbranch_scc1 L_k5_end")
    a(f"s_load_dwordx2 s[4:5], s[0:1], {KA_WS}")
    a(f"s_load_dwordx2 s[6:7], s[0:1], {KA_OUT}")
    a(f"s_load_dwordx2 s[8:9], s[0:1], {KA_B2}")
    a("s_mul_i32 s10, s2, 3641\ns_lshr_b32 s10, s10, 16")
    a("s_mul_i32 s11, s10, 18\ns_sub_u32 s11, s2, s11")
    a("v_lshlrev_b32 v1, 4, v0")
    a("s_lshl_b32 s12, s2, 12")
    a("v_add_u32 v1, s12, v1")
    a("v_lshrrev_b32 v2, 6, v0\nv_lshlrev_b32 v2, 4, v2\nv_and_b32 v3, 15, v0\nv_add_u32 v2, v2, v3")
    a("s_lshl_b32 s13, s10, 6\nv_add_u32 v2, s13, v2\nv_mul_u32_u24 v2, 1152, v2")
    a("v_bfe_u32 v3, v0, 4, 2\nv_lshlrev_b32 v3, 4, v3\ns_lshl_b32 s13, s11, 6\nv_add_u32 v3, s13, v3")
    a("v_add_u32 v2, v2, v3")
    a("s_waitcnt lgkmcnt(0)")
    srd(a, 16, 4, WS_P, SZ_P)
    srd(a, 20, 4, WS_H, SZ_H)
    srd(a, 24, 8, 0, D * 2)
    srd(a, 28, 6, 0, S * D * 2)
    PL = SZ_P // 8
    for j in range(8):
        a(f"s_mov_b32 s33, {j*PL}") if j else None
        a(f"buffer_load_dwordx4 v[{8+4*j}:{11+4*j}], v1, s[16:19], {'s33' if j else '0'} offen")
    a("buffer_load_dwordx4 v[40:43], v2, s[20:23], 0 offen")
    a("buffer_load_dwordx4 v[44:47], v3, s[24:27], 0 offen")
    for j in range(8):
        for d in range(4):
            src = 8 + 4 * j + d
            if j == 0:
                a(f"v_lshlrev_b32 v{48+2*d}, 16, v{src}")
                a(f"v_and_b32 v{49+2*d}, 0xffff0000, v{src}")
            else:
                a(f"v_lshlrev_b32 v56, 16, v{src}")
                a(f"v_and_b32 v57, 0xffff0000, v{src}")
                a(f"v_add_f32 v{48+2*d}, v{48+2*d}, v56")
                a(f"v_add_f32 v{49+2*d}, v{49+2*d}, v57")
    for base in (44, 40):
        for d in range(4):
            a(f"v_lshlrev_b32 v56, 16, v{base+d}")
            a(f"v_and_b32 v57, 0xffff0000, v{base+d}")
            a(f"v_add_f32 v{48+2*d}, v{48+2*d}, v56")
            a(f"v_add_f32 v{49+2*d}, v{49+2*d}, v57")
    for d in range(4):
        a(f"v_cvt_pk_bf16_f32 v{60+d}, v{48+2*d}, v{49+2*d}")
    a("buffer_store_dwordx4 v[60:63], v2, s[28:31], 0 offen")
    a("L_k5_end:\ns_endpgm")
    return header(name) + a.text(), descriptor(name, 64, 64, 48)
```

```python
import sys
from common import *
from k1 import gen_k1, K1_LDS
from k3 import gen_k3, K3_LDS
from k4 import gen_k4, K4_LDS
from k5 import gen_k5
NAME = "sequential_preLN__linear_attn_block__dense_activation_squared_relu__prompt"
def build(opts):
    ref = open(f"cdna_kernels/{NAME}.s.ref").read().split("\n")
    head = [l for l in ref if l.startswith(";") and "@launch" not in l and "Override launch" not in l and "grid=ceil" not in l and l.startswith("; ") and not l.startswith(";    ;")]
    head = [l for l in ref[:12]]
    ks = [("qkv_kernel", gen_k1("qkv_kernel", opts.get("sw_flags", "")), 256, 512, K1_LDS),
          ("attn_kernel", gen_k3("attn_kernel"), 256, 256, K3_LDS),
          ("ffn_kernel", gen_k4("ffn_kernel", opts.get("p_flags", "")), 256, 256, K4_LDS),
          ("reduce_kernel", gen_k5("reduce_kernel"), 576, 256, 0)]
    out = list(head)
    for n, _, g, b, l in ks: out.append(f"; @launch kernel={n} grid=({g},1,1) block=({b},1,1) lds={l}")
    for k in range(opts.get("dummy", 0)): out.append("; @launch kernel=dummy_kernel grid=(256,1,1) block=(256,1,1) lds=0")
    out.append('.amdgcn_target "amdgcn-amd-amdhsa--gfx950"')
    txt = "\n".join(out) + "\n"
    for n, (t, d), *_ in ks: txt += t
    if opts.get("dummy"): txt += header("dummy_kernel") + "  s_endpgm\n"
    for n, (t, d), *_ in ks: txt += d
    if opts.get("dummy"): txt += descriptor("dummy_kernel", 8, 8, 16)
    return txt
if __name__ == "__main__":
    opts = {}
    outp = f"cdna_kernels/{NAME}.s"
    for x in sys.argv[1:]:
        k, v = x.split("=", 1)
        if k == "out": outp = v
        else: opts[k] = int(v) if v.isdigit() else (" " + v.replace("+", " ") if k.endswith("flags") else v)
    open(outp, "w").write(build(opts))
```

```python
from asmlib import *
S, D, F, H = 2048, 576, 4608, 32
KA_X, KA_WQKV, KA_WO, KA_BX, KA_W1, KA_B1, KA_W2, KA_B2, KA_OUT, KA_DBG, KA_WS = [8 * i for i in range(11)]
WS_W = 0
SZ_W = 8 * 4 * 324 * 1024
WS_WO = WS_W + SZ_W
SZ_WO = 8 * 4 * 25 * 1024
WS_CS = WS_WO + SZ_WO
SZ_CS = 3 * F * 4
WS_KV = (WS_CS + SZ_CS + 4095) // 4096 * 4096
KVH = 1408
SZ_KV = 32 * KVH
WS_PQ = (WS_KV + SZ_KV + 4095) // 4096 * 4096
SZ_PQ = 128 * 4 * 4608
WS_H = WS_PQ + SZ_PQ
SZ_H = S * D * 2
WS_ST = WS_H + SZ_H
SZ_ST = S * 64
WS_P = WS_ST + SZ_ST
SZ_P = 8 * 32 * 72 * 1024
WS_END = WS_P + SZ_P

def srd(a, s, base_pair, off, size, off_sreg=None):
    lo, hi = base_pair, base_pair + 1
    if off_sreg is not None:
        a(f"s_add_u32 s{s}, s{lo}, s{off_sreg}")
        a(f"s_addc_u32 s{s+1}, s{hi}, 0")
        if off:
            a(f"s_add_u32 s{s}, s{s}, {off}")
            a(f"s_addc_u32 s{s+1}, s{s+1}, 0")
    elif off:
        a(f"s_add_u32 s{s}, s{lo}, {off}")
        a(f"s_addc_u32 s{s+1}, s{hi}, 0")
    else:
        a(f"s_mov_b32 s{s}, s{lo}")
        a(f"s_mov_b32 s{s+1}, s{hi}")
    a(f"s_and_b32 s{s+1}, s{s+1}, 0xffff")
    a(f"s_mov_b32 s{s+2}, {size}")
    a(f"s_mov_b32 s{s+3}, 0x20000")

def header(name):
    return f".text\n.globl {name}\n.p2align 8\n.type {name},@function\n{name}:\n"

def descriptor(name, vgpr, accum, sgpr=96):
    return (f'.section .rodata,"a"\n.p2align 6\n.amdhsa_kernel {name}\n'
            f"  .amdhsa_next_free_vgpr {vgpr}\n  .amdhsa_next_free_sgpr {sgpr}\n  .amdhsa_accum_offset {accum}\n"
            "  .amdhsa_group_segment_fixed_size 0\n  .amdhsa_kernarg_size 88\n  .amdhsa_user_sgpr_count 2\n"
            "  .amdhsa_user_sgpr_kernarg_segment_ptr 1\n  .amdhsa_system_sgpr_workgroup_id_x 1\n"
            "  .amdhsa_float_denorm_mode_32 3\n"
            ".end_amdhsa_kernel\n")

def interleave(main, fill, start=0, per=None):
    out = []; n = len(main) - start
    fi = 0
    for k, m in enumerate(main):
        out.append(m)
        if k >= start:
            want = (len(fill) * (k - start + 1) + n - 1) // n if per is None else min(len(fill), per * (k - start + 1))
            while fi < want:
                out.append(fill[fi]); fi += 1
    out += fill[fi:]
    return out

def xg_reduce(a, v, t):
    a(f"v_mov_b32 v{t}, v{v}")
    a(f"v_permlane16_swap_b32 v{v}, v{t}")
    a(f"v_add_f32 v{v}, v{v}, v{t}")
    a(f"v_mov_b32 v{t}, v{v}")
    a(f"v_permlane32_swap_b32 v{v}, v{t}")
    a(f"v_add_f32 v{v}, v{v}, v{t}")

def xg_reduce_n(a, vs, ts):
    for op in ("v_permlane16_swap_b32", "v_permlane32_swap_b32"):
        for v, t in zip(vs, ts): a(f"v_mov_b32 v{t}, v{v}")
        for v, t in zip(vs, ts): a(f"{op} v{v}, v{t}")
        for v, t in zip(vs, ts): a(f"v_add_f32 v{v}, v{v}, v{t}")

import struct
def f2u(x): return struct.unpack("<I", struct.pack("<f", x))[0]
def fhex(x): return hex(f2u(x))
KV_MM, KV_AM, KV_RM, KV_AR = 0, 1024, 1216, 1344
OOB = 0x7ffffff0

WS_TS = 48 << 20
class Stamps:
    op = "s_memrealtime"
    def __init__(self, a, on, kid, sbase, ws_pair, nwaves):
        self.a, self.on, self.kid, self.sb, self.ws, self.nw = a, on, kid, sbase, ws_pair, nwaves
        self.n = 0
    def stamp(self, k):
        if not self.on: return
        self.a.raw(f"{Stamps.op} s[{self.sb+2*k}:{self.sb+2*k+1}]")
        self.n = max(self.n, k + 1)
    def flush(self, k, vt0, vt1, swave=None):
        if not self.on: return
        a = self.a
        a.raw("s_waitcnt vmcnt(0) lgkmcnt(0)")
        self.stamp(k)
        a.raw("s_waitcnt lgkmcnt(0)")
        r = 88
        a.raw(f"s_add_u32 s{r}, s{self.ws}, {WS_TS + self.kid * (1 << 20)}\ns_addc_u32 s{r+1}, s{self.ws+1}, 0\ns_and_b32 s{r+1}, s{r+1}, 0xffff\ns_mov_b32 s{r+2}, {1<<20}\ns_mov_b32 s{r+3}, 0x20000")
        a.raw(f"s_mov_b64 exec, 1\nv_lshrrev_b32 v{vt0}, 6, v0\ns_lshl_b32 s92, s2, 3\nv_add_u32 v{vt0}, s92, v{vt0}\nv_lshlrev_b32 v{vt0}, 6, v{vt0}")
        for i in range(k + 1):
            a.raw(f"v_mov_b32 v{vt1}, s{self.sb+2*i}\nbuffer_store_dword v{vt1}, v{vt0}, s[{r}:{r+3}], 0 offen offset:{4*i}\ns_nop 1")
```

```python
from common import *
K1_LDS = 163840
CH = 18432
XB = CH

def gen_sw(a, st_flags, T):
    sJ, sN, sT, sT2, sCb, sTh, sLds = 32, 33, 34, 35, 36, 37, 38
    sSrc, sDst, sAux = 8, 12, 16
    ONES = 39
    sD = 40
    vLane, vOff, vRd, vT, vT2, vL16 = 1, 2, 3, 8, 9, 10
    vAcc = 12
    vF = 16
    a(f"s_load_dwordx2 s[4:5], s[0:1], {KA_WS}")
    a(f"s_load_dwordx4 s[20:23], s[0:1], {KA_W1}")
    a(f"s_load_dwordx2 s[24:25], s[0:1], {KA_W2}")
    a(f"s_load_dwordx2 s[26:27], s[0:1], {KA_WO}")
    a(f"s_load_dwordx2 s[28:29], s[0:1], {KA_DBG}")
    a(f"v_lshrrev_b32 v{vT}, 6, v0\nv_readfirstlane_b32 s{sT}, v{vT}")
    a(f"s_and_b32 s{sJ}, s2, 7\ns_lshr_b32 s{sN}, s2, 3\ns_lshl_b32 s{sN}, s{sN}, 3\ns_add_u32 s{sN}, s{sN}, s{sT}")
    a(f"s_mul_i32 s{sLds}, s{sT}, 20480")
    a(f"v_and_b32 v{vLane}, 63, v0\nv_lshlrev_b32 v{vL16}, 4, v{vLane}")
    a("s_waitcnt lgkmcnt(0)")
    a(f"s_cmp_ge_u32 s{sN}, 54\ns_cbranch_scc1 L_sw_misc")
    a(f"s_cmp_ge_u32 s{sN}, 27\ns_cselect_b32 s44, 1, 0\ns_cselect_b32 s{sT}, 27, 0\ns_sub_u32 s{sN}, s{sN}, s{sT}")
    a(f"s_mul_i32 s{sCb}, s{sN}, 86\ns_lshr_b32 s{sCb}, s{sCb}, 8\ns_mul_i32 s{sT}, s{sCb}, 3\ns_sub_u32 s{sTh}, s{sN}, s{sT}")
    srd(a, sDst, 4, WS_W, SZ_W)
    for tt in range(4):
        a(f"s_lshl_b32 s{sT}, s{sCb}, 2\ns_add_u32 s{sT}, s{sT}, {tt}")
        a(f"s_mul_i32 s{sT2}, s{sT}, 57\ns_lshr_b32 s{sT2}, s{sT2}, 9")
        a(f"s_mul_i32 s45, s{sT2}, 9\ns_sub_u32 s{sT}, s{sT}, s45")
        a(f"s_and_b32 s45, s{sT2}, s44\ns_cmp_eq_u32 s{sT}, 0\ns_cselect_b32 s46, 8, -1\ns_mul_i32 s45, s45, s46\ns_add_u32 s{sT}, s{sT}, s45")
        a(f"s_mul_i32 s{sT}, s{sT}, 18\ns_mul_i32 s{sT2}, s{sT2}, 324\ns_add_u32 s{sT}, s{sT}, s{sT2}")
        a(f"s_mul_i32 s{sT2}, s{sJ}, 1296\ns_add_u32 s{sT}, s{sT}, s{sT2}\ns_mul_i32 s{sT2}, s44, 162\ns_add_u32 s{sT}, s{sT}, s{sT2}")
        a(f"s_mul_i32 s{sT2}, s{sTh}, 6\ns_add_u32 s{sT}, s{sT}, s{sT2}\ns_lshl_b32 s{sD+tt}, s{sT}, 10")
    a(f"s_mov_b32 s{ONES}, 0x3f803f80")
    a("s_cmp_eq_u32 s44, 1\ns_cbranch_scc1 L_sw_w2")
    common_tail = []
    for job in ("w1", "w2"):
        b = Prog() if False else a
        if job == "w2": a("L_sw_w2:")
        RS = 9216 if job == "w1" else 1152
        if job == "w1":
            a(f"s_mul_i32 s{sT}, s{sTh}, {192*RS}\ns_mul_i32 s{sT2}, s{sJ}, 1152\ns_add_u32 s{sT}, s{sT}, s{sT2}\ns_lshl_b32 s{sT2}, s{sCb}, 7\ns_add_u32 s{sT}, s{sT}, s{sT2}")
            a(f"s_sub_u32 s47, {D*F*2}, s{sT}")
            srd(a, sSrc, 20, 0, 0, sT)
        else:
            a(f"s_mul_i32 s{sT}, s{sJ}, 576\ns_mul_i32 s{sT2}, s{sTh}, 192\ns_add_u32 s{sT}, s{sT}, s{sT2}\ns_mul_i32 s{sT}, s{sT}, {RS}\ns_lshl_b32 s{sT2}, s{sCb}, 7\ns_add_u32 s{sT}, s{sT}, s{sT2}")
            a(f"s_sub_u32 s47, {D*F*2}, s{sT}")
            srd(a, sSrc, 24, 0, 0, sT)
        a(f"s_mov_b32 s{sSrc+2}, s47")
        a(f"v_lshrrev_b32 v{vT}, 3, v{vLane}\nv_mul_u32_u24 v{vOff}, {RS}, v{vT}")
        a(f"v_bfe_u32 v{vT}, v{vLane}, 4, 1\nv_lshlrev_b32 v{vT}, {1 if job=='w1' else 2}, v{vT}\nv_and_b32 v{vT2}, 7, v{vLane}\nv_xor_b32 v{vT}, v{vT}, v{vT2}")
        if job == "w1":
            a(f"v_xor_b32 v{vT2}, 4, v{vT}\nv_lshl_add_u32 v7, v{vT2}, 4, v{vOff}")
        a(f"v_lshl_add_u32 v{vOff}, v{vT}, 4, v{vOff}")
        def dma(u):
            for pc in range(4):
                a(f"s_add_u32 m0, s{sLds}, {(u % 5)*4096 + pc*1024}")
                a(f"s_mov_b32 s{sT}, {(u*32 + pc*8)*RS}")
                vo = 7 if (job == "w1" and pc & 1) else vOff
                a(f"buffer_load_dwordx4 v{vo}, s[{sSrc}:{sSrc+3}], s{sT} offen lds", tag=f"{job}u{u}")
        for u in range(5): dma(u)
        a(f"v_bfe_u32 v{vT}, v{vLane}, 2, 2")
        a(f"v_lshrrev_b32 v{vT2}, 4, v{vLane}")
        if job == "w1":
            a(f"v_lshl_add_u32 v11, v{vT2}, 3, v{vT}\nv_lshlrev_b32 v11, 7, v11")
            a(f"v_lshrrev_b32 v{vT}, 1, v{vT}\nv_and_b32 v{vT2}, 1, v{vT2}\nv_lshl_or_b32 v{vT}, v{vT2}, 1, v{vT}")
            a(f"v_and_b32 v{vT2}, 3, v{vLane}\nv_lshl_add_u32 v11, v{vT2}, 3, v11\nv_add_u32 v11, s{sLds}, v11")
            for tt in range(4):
                a(f"v_xor_b32 v{vT2}, {tt}, v{vT}\nv_lshl_add_u32 v{vRd+tt}, v{vT2}, 5, v11")
            hfo = 512
        else:
            a(f"v_lshl_add_u32 v11, v{vT2}, 2, v{vT}\nv_lshlrev_b32 v11, 7, v11\nv_add_u32 v11, s{sLds}, v11")
            a(f"v_lshrrev_b32 v{vT}, 1, v{vT}\nv_lshlrev_b32 v{vT}, 2, v{vT}\nv_and_b32 v{vT2}, 3, v{vLane}\nv_xor_b32 v{vT}, v{vT}, v{vT2}")
            for tt in range(4):
                a(f"v_xor_b32 v{vT2}, {4*(tt>>1)}, v{vT}\nv_lshl_add_u32 v{vRd+tt}, v{vT2}, 4, v11")
                if tt & 1: a(f"v_add_u32 v{vRd+tt}, 8, v{vRd+tt}")
            hfo = 2048
        if job == "w1":
            for tt in range(4): a(f"v_mov_b32 v{vAcc+tt}, 0")
        for u in range(6):
            a.wait_vm(f"{job}u{u}")
            f0 = vF + 16 * (u & 1)
            for tt in range(4):
                for hf in range(2):
                    a(f"ds_read_b64_tr_b16 {vr(f0+4*tt+2*hf,2)}, v{vRd+tt} offset:{(u%5)*4096 + hf*hfo}")
            if u == 0:
                a("s_waitcnt lgkmcnt(0)"); dma(5)
            for tt in range(4):
                a(f"buffer_store_dwordx4 {vr(f0+4*tt,4)}, v{vL16}, s[{sDst}:{sDst+3}], s{sD+tt} offen offset:{(u%4)*1024}{st_flags}")
            if u == 3:
                for tt in range(4): a(f"s_add_u32 s{sD+tt}, s{sD+tt}, 4096")
            if job == "w1":
                for d in range(4):
                    for tt in range(4):
                        a(f"v_dot2_f32_bf16 v{vAcc+tt}, v{f0+4*tt+d}, s{ONES}, v{vAcc+tt}")
        if job == "w1":
            xg_reduce_n(a, [vAcc + t for t in range(4)], [vF + t for t in range(4)])
            a(f"v_lshrrev_b32 v{vT2}, 4, v{vLane}")
            for tt in range(1, 4):
                a(f"v_cmp_eq_u32 vcc, {tt}, v{vT2}\nv_cndmask_b32 v{vAcc}, v{vAcc}, v{vAcc+tt}, vcc")
            srd(a, sAux, 4, WS_CS, SZ_CS)
            a(f"s_mul_i32 s{sT}, s{sTh}, {F}\ns_mul_i32 s{sT2}, s{sJ}, 576\ns_add_u32 s{sT}, s{sT}, s{sT2}\ns_lshl_b32 s{sT2}, s{sCb}, 6\ns_add_u32 s{sT}, s{sT}, s{sT2}\ns_lshl_b32 s{sT}, s{sT}, 2")
            a(f"v_lshlrev_b32 v{vT}, 2, v{vLane}")
            a(f"buffer_store_dword v{vAcc}, v{vT}, s[{sAux}:{sAux+3}], s{sT} offen")
        T.flush(1, 1, 2)
        a("s_endpgm")
        a.reset()
    a("L_sw_misc:")
    a(f"s_cmp_eq_u32 s{sN}, 54\ns_cbranch_scc1 L_sw_zero")
    a(f"s_cmp_lt_u32 s{sN}, 56\ns_cbranch_scc1 L_k1_end")
    a(f"s_and_b32 s{sT}, s{sN}, 1\ns_cmp_eq_u32 s{sT}, 1\ns_cbranch_scc1 L_k1_end")
    sG = 36
    a(f"s_sub_u32 s{sG}, s{sN}, 56\ns_lshr_b32 s{sG}, s{sG}, 1")
    a(f"s_mul_i32 s{sT}, s{sG}, {144*1152}\ns_mul_i32 s{sT2}, s{sJ}, 144\ns_add_u32 s{sT}, s{sT}, s{sT2}")
    a(f"s_sub_u32 s47, {D*D*2}, s{sT}\ns_min_u32 s47, s47, {144*1152}")
    srd(a, sSrc, 26, 0, 0, sT)
    a(f"s_mov_b32 s{sSrc+2}, s47")
    a(f"s_lshl_b32 s{sT}, s{sJ}, 2\ns_add_u32 s{sT}, s{sT}, s{sG}\ns_mul_i32 s{sT}, s{sT}, {25*1024}")
    srd(a, sDst, 4, WS_WO, 25 * 1024, sT)
    a(f"v_mul_u32_u24 v{vT}, 57, v{vLane}\nv_lshrrev_b32 v{vT}, 9, v{vT}\nv_mul_u32_u24 v{vT2}, 9, v{vT}\nv_sub_u32 v7, v{vLane}, v{vT2}")
    a(f"v_mul_u32_u24 v{vOff}, 1152, v{vT}\nv_lshl_add_u32 v{vOff}, v7, 4, v{vOff}")
    a(f"v_mov_b32 v11, {7*1152+16}\nv_mov_b32 v12, {8*1152+16-144}")
    for n in range(21):
        a(f"s_add_u32 m0, s{sLds}, {n*1024}")
        a(f"buffer_load_dwordx4 v{vOff}, s[{sSrc}:{sSrc+3}], 0 offen lds", tag="wo")
        if n < 20:
            a(f"v_cmp_eq_u32 vcc, 8, v7\nv_add_u32 v7, 1, v7\nv_cndmask_b32 v{vT}, v11, v12, vcc\nv_cndmask_b32 v7, v7, 0, vcc\nv_add_u32 v{vOff}, v{vOff}, v{vT}")
    a(f"v_bfe_u32 v{vT}, v{vLane}, 2, 2\nv_lshrrev_b32 v{vT2}, 4, v{vLane}")
    a(f"v_lshl_add_u32 v11, v{vT2}, 2, v{vT}\nv_mul_u32_u24 v11, 144, v11\nv_add_u32 v11, s{sLds}, v11")
    a(f"v_lshrrev_b32 v12, 1, v{vT2}\nv_and_b32 v13, 2, v{vT}\nv_add_u32 v12, v12, v13\nv_mul_u32_u24 v12, 36, v12")
    a(f"v_and_b32 v13, 1, v{vT2}\nv_lshl_add_u32 v12, v13, 1, v12\nv_and_b32 v13, 1, v{vT}\nv_add3_u32 v12, v12, v13, 16")
    a(f"v_mul_u32_u24 v12, 144, v12\nv_add_u32 v12, s{sLds}, v12")
    a(f"v_and_b32 v13, 3, v{vLane}")
    a(f"v_lshl_add_u32 v3, v13, 4, v11\nv_lshl_add_u32 v4, v13, 3, v11\nv_lshl_add_u32 v5, v13, 4, v12\nv_lshl_add_u32 v6, v13, 3, v12")
    a.wait_vm("wo")
    k = 0
    for v in range(5):
        for t in range(5):
            f0 = vF + 4 * (k % 8)
            col = (64 * (t >> 1) + 8 * (t & 1)) if t < 4 else 128
            if v < 4:
                ad = 3 if t < 4 else 4
                for hf in range(2):
                    a(f"ds_read_b64_tr_b16 {vr(f0+2*hf,2)}, v{ad} offset:{(36*v+20*hf)*144+col}")
            else:
                ad = 5 if t < 4 else 6
                a(f"ds_read_b64_tr_b16 {vr(f0,2)}, v{ad} offset:{col}")
                a(f"v_mov_b32 v{f0+2}, 0\nv_mov_b32 v{f0+3}, 0")
            if k % 4 == 0: a(f"s_mov_b32 s{sT}, {k*1024}")
            a(f"buffer_store_dwordx4 {vr(f0,4)}, v{vL16}, s[{sDst}:{sDst+3}], s{sT} offen offset:{(k%4)*1024}{st_flags}")
            k += 1
    T.flush(1, 1, 2)
    a("s_endpgm")
    a.reset()
    a("L_sw_zero:")
    a(f"s_mul_i32 s{sT}, s{sJ}, {4*KVH}")
    srd(a, sDst, 4, WS_KV, 4 * KVH, sT)
    srd(a, sAux, 28, 0, 256)
    for r in range(4): a(f"v_mov_b32 v{vF+r}, 0")
    for n in range(6):
        if n == 4: a(f"v_add_u32 v{vL16}, 4096, v{vL16}")
        a(f"buffer_store_dwordx4 {vr(vF,4)}, v{vL16}, s[{sDst}:{sDst+3}], 0 offen offset:{(n%4)*1024} sc0 sc1")
    a(f"s_lshl_b32 s{sT}, s{sJ}, 2\nv_mov_b32 v{vT}, s{sT}\nv_mov_b32 v{vT2}, 1")
    a("s_waitcnt vmcnt(0)")
    a(f"buffer_store_dword v{vT2}, v{vT}, s[{sAux}:{sAux+3}], 0 offen sc0 sc1")
    a("s_endpgm")
    a.reset()

def gen_k1(name, st_flags="", ts=False):
    a = Prog()
    T = Stamps(a, ts, 0, 82 - 18, 4, 8)
    T.sb = 94 - 12
    tsk = int(ts) if ts else 0
    a("s_cmp_ge_u32 s2, 256\ns_cbranch_scc1 L_k1_end")
    T.stamp(0)
    a("s_cmp_ge_u32 s2, 64\ns_cbranch_scc1 L_k1_gemm")
    gen_sw(a, st_flags, T)
    T.ws = 6
    a("L_k1_gemm:")
    V = Regs("v", 1, 256)
    vLane = V.alloc(); vT = V.alloc(); vT2 = V.alloc(); vXo = V.alloc(); vRdM = V.alloc(); vRdR = V.alloc(); vL16 = V.alloc()
    vW = V.alloc(3); vG = V.alloc(); vM = V.alloc()
    vS = V.alloc(8, 4)
    vX = V.alloc(72, 4); vFr = V.alloc(64, 4); vAcc = V.alloc(36, 4); vTmp = V.alloc(16, 4)
    sX, sW, sO, sDbg = 8, 12, 16, 20
    sWave, sJ, sI, sT, sT2, sRole, sRot, ONES = 32, 33, 34, 35, 36, 37, 38, 39
    sXo, sWo = 40, 50
    sLd = 60
    a(f"s_load_dwordx4 s[24:27], s[0:1], {KA_X}")
    a(f"s_load_dwordx4 s[4:7], s[0:1], {KA_DBG}")
    a(f"v_lshrrev_b32 v{vT}, 6, v0\nv_readfirstlane_b32 s{sWave}, v{vT}")
    a(f"s_cmp_ge_u32 s2, 192\ns_cselect_b32 s{sRole}, 1, 0")
    a(f"s_sub_u32 s{sT}, s2, 64\ns_lshr_b32 s{sI}, s{sT}, 3\ns_and_b32 s{sJ}, s2, 7")
    a(f"s_sub_u32 s{sT}, s2, 192\ns_lshr_b32 s{sT}, s{sT}, 2\ns_and_b32 s{sT2}, s2, 3")
    a(f"s_cmp_eq_u32 s{sRole}, 1\ns_cselect_b32 s{sI}, s{sT}, s{sI}\ns_cselect_b32 s{sJ}, s{sT2}, s{sJ}")
    a(f"s_lshl_b32 s{sT}, s{sJ}, s{sRole}\ns_add_u32 s{sRot}, s{sI}, s{sT}")
    a(f"s_mul_i32 s{sT}, s{sRot}, 57\ns_lshr_b32 s{sT}, s{sT}, 9\ns_mul_i32 s{sT}, s{sT}, 9\ns_sub_u32 s{sRot}, s{sRot}, s{sT}")
    for c in range(9):
        a(f"s_lshl_b32 s{sXo+c}, s{sRot}, 7\ns_mul_i32 s{sWo+c}, s{sRot}, {64*3456}")
        if c < 8: a(f"s_add_u32 s{sRot}, s{sRot}, 1\ns_cmp_eq_u32 s{sRot}, 9\ns_cselect_b32 s{sRot}, 0, s{sRot}")
    a(f"v_and_b32 v{vLane}, 63, v0\nv_and_b32 v{vM}, 15, v0\nv_bfe_u32 v{vG}, v0, 4, 2\nv_lshlrev_b32 v{vL16}, 4, v{vLane}")
    a(f"s_lshl_b32 s{sT}, s{sI}, 7\ns_lshl_b32 s{sT2}, s{sWave}, 4\ns_add_u32 s{sT}, s{sT}, s{sT2}")
    a(f"v_add_u32 v{vXo}, s{sT}, v{vM}\nv_mul_u32_u24 v{vXo}, 1152, v{vXo}\nv_lshl_add_u32 v{vXo}, v{vG}, 4, v{vXo}")
    a("s_waitcnt lgkmcnt(0)")
    srd(a, sX, 24, 0, S * D * 2)
    srd(a, sW, 26, 0, D * 3 * D * 2)
    for c in range(9):
        for ks in range(2):
            a(f"buffer_load_dwordx4 {vr(vX+4*(2*c+ks),4)}, v{vXo}, s[{sX}:{sX+3}], s{sXo+c} offen offset:{64*ks}")
    a(f"s_mul_i32 s{sT}, s{sJ}, 144\ns_add_u32 s61, s{sT}, 1152\ns_lshl_b32 s{sT}, s{sT}, 1")
    a(f"s_cmp_eq_u32 s{sRole}, 1\ns_cselect_b32 s61, s{sT}, s61\ns_cselect_b32 s62, 0, {1152-144}")
    a(f"s_mul_i32 s{sLd}, s{sWave}, 3072\ns_mul_i32 s{sT}, s{sWave}, 192")
    for n in range(3):
        a(f"v_add_u32 v{vT}, s{sT}, v{vLane}")
        if n: a(f"v_add_u32 v{vT}, {64*n}, v{vT}")
        a(f"v_mul_u32_u24 v{vT2}, 3641, v{vT}\nv_lshrrev_b32 v{vT2}, 16, v{vT2}")
        a(f"v_mul_u32_u24 v{vTmp}, 18, v{vT2}\nv_sub_u32 v{vT}, v{vT}, v{vTmp}")
        a(f"v_and_b32 v{vTmp}, 0x33, v{vT2}\nv_bfe_u32 v{vTmp+1}, v{vT2}, 2, 1\nv_lshl_or_b32 v{vTmp}, v{vTmp+1}, 3, v{vTmp}\nv_bfe_u32 v{vTmp+1}, v{vT2}, 3, 1\nv_lshl_or_b32 v{vTmp}, v{vTmp+1}, 2, v{vTmp}")
        a(f"v_mul_u32_u24 v{vTmp}, 3456, v{vTmp}\nv_lshl_add_u32 v{vTmp}, v{vT}, 4, v{vTmp}\nv_add_u32 v{vTmp}, s61, v{vTmp}")
        a(f"v_cmp_lt_u32 vcc, 8, v{vT}\nv_add_u32 v{vTmp+1}, s62, v{vTmp}\nv_cndmask_b32 v{vW+n}, v{vTmp}, v{vTmp+1}, vcc")
    def wdma(c):
        for n in range(3):
            a(f"s_add_u32 m0, s{sLd}, {(c % 8)*CH + n*1024}")
            a(f"buffer_load_dwordx4 v{vW+n}, s[{sW}:{sW+3}], s{sWo+c} offen lds", tag=f"w{c}")
    a(f"s_cmp_ge_u32 s{sWave}, 6\ns_cbranch_scc1 L_k1_nodma")
    a.cond_begin()
    for c in range(8): wdma(c)
    a("s_branch L_k1_dmaj")
    a.cond_end()
    a.raw("L_k1_nodma:\ns_waitcnt vmcnt(0)\nL_k1_dmaj:")
    a(f"v_bfe_u32 v{vT}, v{vLane}, 2, 2\nv_lshrrev_b32 v{vT2}, 1, v{vG}\nv_lshl_add_u32 v{vT}, v{vT2}, 4, v{vT}\nv_and_b32 v{vT2}, 1, v{vG}\nv_lshl_add_u32 v{vT}, v{vT2}, 2, v{vT}")
    a(f"v_mul_u32_u24 v{vT}, 288, v{vT}\nv_and_b32 v{vT2}, 3, v{vLane}\nv_lshl_add_u32 v{vRdM}, v{vT2}, 3, v{vT}")
    a(f"v_mul_u32_u24 v{vT2}, 72, v{vT2}\nv_add3_u32 v{vRdR}, v{vT}, v{vT2}, 32")
    if tsk == 6: T.stamp(1)
    if tsk == 7:
        a(f"v_mov_b32 v{vS}, v{vX+71}"); T.stamp(1)
    a(f"s_mov_b32 s{ONES}, 0x3f803f80")
    for k in range(4): a(f"v_mov_b32 v{vS+k}, 0")
    for r in range(72):
        a(f"v_dot2_f32_bf16 v{vS+(r&1)}, v{vX+r}, s{ONES}, v{vS+(r&1)}")
        a(f"v_dot2_f32_bf16 v{vS+2+(r&1)}, v{vX+r}, v{vX+r}, v{vS+2+(r&1)}")
    a(f"v_add_f32 v{vS}, v{vS}, v{vS+1}\nv_add_f32 v{vS+2}, v{vS+2}, v{vS+3}")
    xg_reduce_n(a, [vS, vS + 2], [vS + 1, vS + 3])
    a(f"s_mov_b32 s{sT}, {fhex(1.0/576)}\ns_mov_b32 s{sT2}, {fhex(1e-5)}")
    a(f"v_mul_f32 v{vS}, s{sT}, v{vS}\nv_mul_f32 v{vS+2}, s{sT}, v{vS+2}")
    a(f"v_fma_f32 v{vS+2}, -v{vS}, v{vS}, v{vS+2}\nv_max_f32 v{vS+2}, 0, v{vS+2}\nv_add_f32 v{vS+2}, s{sT2}, v{vS+2}")
    a(f"v_rsq_f32 v{vS+4}, v{vS+2}\nv_mul_f32 v{vS+6}, -v{vS}, v{vS+4}")
    for r0 in range(0, 72, 4):
        for r in range(r0, r0 + 4):
            t = vTmp + 2 * (r & 3)
            a(f"v_lshlrev_b32 v{t}, 16, v{vX+r}\nv_and_b32 v{t+1}, 0xffff0000, v{vX+r}")
        for r in range(r0, r0 + 4):
            t = vTmp + 2 * (r & 3)
            a(f"v_pk_fma_f32 {vr(t,2)}, {vr(t,2)}, {vr(vS+4,2)}, {vr(vS+6,2)} op_sel_hi:[1,0,0]")
        for r in range(r0, r0 + 4):
            t = vTmp + 2 * (r & 3)
            a(f"v_cvt_pk_bf16_f32 v{vX+r}, v{t}, v{t+1}")
    def ST(k):
        if tsk == k:
            a.raw("s_waitcnt lgkmcnt(0)"); T.stamp(1); a.raw("s_waitcnt lgkmcnt(0)")
    ST(1)
    a(f"s_cmp_eq_u32 s{sRole}, 1\ns_cbranch_scc1 L_k1_q")
    cols = [0, 40, 72, 112, 144, 184, 216, 256]
    def reads(n):
        ksg, tile = divmod(n, 9)
        ks = ksg & 1; f = vFr + 4 * (n % 8)
        ad, col = (vRdM, cols[tile]) if tile < 8 else (vRdR, 0)
        return [f"ds_read_b64_tr_b16 {vr(f+2*hf,2)}, v{ad} offset:{ks*9216 + hf*2304 + col}" for hf in range(2)]
    def phi(a, src, t, eps):
        a(f"v_mul_f32 v{t}, s{sT}, v{src}\nv_exp_f32 v{t}, v{t} clamp\nv_max_f32 v{src}, 0, v{src}\nv_add_f32 v{src}, s{eps}, v{src}\nv_add_f32 v{src}, v{src}, v{t}")
    snapshot = None
    for role in (0, 1):
        if role == 1:
            a("L_k1_q:")
            a.replay_vm = True
            for c in range(8):
                for n in range(3): a.phantom_vm(f"w{c}")
        def newchunk(c):
            a.wait_vm(f"w{c}")
            a("s_barrier")
            if c in (0, 4, 8): ST(2 + c // 4)
            if c:
                d = CH if c < 8 else -7 * CH
                a(f"v_add_u32 v{vRdM}, {hex(d & 0xffffffff)}, v{vRdM}\nv_add_u32 v{vRdR}, {hex(d & 0xffffffff)}, v{vRdR}")
            if c == 2:
                a(f"s_cmp_ge_u32 s{sWave}, 6\ns_cbranch_scc1 L_k1_sk{role}")
                a.cond_begin(); wdma(8); a.cond_end()
                a.raw(f"L_k1_sk{role}:")
        LA = 7
        def issue(n):
            if n >= 162: return
            if n % 18 == 0: newchunk(n // 18)
            for y in reads(n): a(y)
        for n in range(LA): issue(n)
        for n in range(162):
            ksg, t = divmod(n, 9)
            f = vr(vFr + 4 * (n % 8), 4); x = vr(vX + 4 * ksg, 4); ac = vr(vAcc + 4 * t, 4)
            A_, B_ = (x, f) if role == 0 else (f, x)
            a(f"v_mfma_f32_16x16x32_bf16 {ac}, {A_}, {B_}, {ac if ksg else 0}")
            issue(n + LA)
        ST(5)
        a(f"s_mov_b32 s{sT}, {fhex(1.4426950408889634)}\ns_mov_b32 s{sT2}, {fhex(1e-6)}")
        if role == 1:
            a(f"s_lshl_b32 s61, s{sI}, 3\ns_add_u32 s61, s61, s{sWave}\ns_lshl_b32 s61, s61, 2\ns_add_u32 s61, s61, s{sJ}\ns_mul_i32 s61, s61, 4608")
            srd(a, sO, 6, WS_PQ, 4608, 61)
            pos = {0: 0, 8: 2, 1: 4, 2: 6, 3: 8, 4: 10, 5: 12, 6: 14, 7: 16}
            PK = vFr
            for t in (0, 8, 1, 2, 3, 4, 5, 6, 7):
                for r in range(4): a(f"v_mul_f32 v{vTmp+r}, s{sT}, v{vAcc+4*t+r}")
                for r in range(4): a(f"v_exp_f32 v{vTmp+r}, v{vTmp+r} clamp")
                for r in range(4): a(f"v_max_f32 v{vAcc+4*t+r}, 0, v{vAcc+4*t+r}")
                for r in range(4): a(f"v_add_f32 v{vAcc+4*t+r}, s{sT2}, v{vAcc+4*t+r}")
                for r in range(4): a(f"v_add_f32 v{vAcc+4*t+r}, v{vAcc+4*t+r}, v{vTmp+r}")
                a(f"v_cvt_pk_bf16_f32 v{PK+pos[t]}, v{vAcc+4*t}, v{vAcc+4*t+1}\nv_cvt_pk_bf16_f32 v{PK+pos[t]+1}, v{vAcc+4*t+2}, v{vAcc+4*t+3}")
                if pos[t] % 4 == 2:
                    a(f"buffer_store_dwordx4 {vr(PK+pos[t]-2,4)}, v{vL16}, s[{sO}:{sO+3}], 0 offen offset:{(pos[t]//4)*1024}")
            a(f"v_lshlrev_b32 v{vT}, 3, v{vLane}\ns_mov_b32 s61, 4096")
            a(f"buffer_store_dwordx2 {vr(PK+16,2)}, v{vT}, s[{sO}:{sO+3}], s61 offen")
            T.flush(2, vT, vT2)
            a("s_endpgm")
            continue
        srd(a, sDbg, 4, 0, 256)
        a(f"s_lshl_b32 s61, s{sJ}, 2\nv_mov_b32 v{vW}, s61")
        a(f"buffer_load_dword v{vW+1}, v{vW}, s[{sDbg}:{sDbg+3}], 0 offen sc0 sc1")
        a(f"s_lshr_b32 s61, s{sWave}, 1\ns_lshl_b32 s61, s61, 10\ns_and_b32 s62, s{sWave}, 1\ns_lshl_b32 s62, s62, 3\ns_add_u32 s61, s61, s62\ns_add_u32 s61, s61, {XB}")
        a(f"v_add_u32 v{vXo}, s61, v{vL16}")
        a(f"v_cmp_gt_u32 s[64:65], 8, v{vM}")
        for t in (4, 5, 6, 7, 0, 1, 2, 3, 8):
            ac = vAcc + 4 * t
            if t < 4 or t == 8:
                d = ac if t < 4 else vTmp + 4
                for r in range(4): a(f"v_mul_f32 v{vTmp+r}, s{sT}, v{ac+r}")
                for r in range(4): a(f"v_exp_f32 v{vTmp+r}, v{vTmp+r} clamp")
                for r in range(4): a(f"v_max_f32 v{d+r}, 0, v{ac+r}")
                for r in range(4): a(f"v_add_f32 v{d+r}, s{sT2}, v{d+r}")
                for r in range(4): a(f"v_add_f32 v{d+r}, v{d+r}, v{vTmp+r}")
                if t == 8:
                    for r in range(4): a(f"v_cndmask_b32 v{ac+r}, v{ac+r}, v{d+r}, s[64:65]")
            a(f"v_cvt_pk_bf16_f32 v{ac}, v{ac}, v{ac+1}\nv_cvt_pk_bf16_f32 v{ac+1}, v{ac+2}, v{ac+3}")
            a(f"ds_write_b64 v{vXo}, {vr(ac,2)} offset:{t*4096}")
        sHH, sCl = 61, 62
        a(f"s_and_b32 s{sHH}, s{sWave}, 3\ns_lshr_b32 s{sCl}, s{sWave}, 2")
        a(f"s_lshl_b32 s66, s{sHH}, 12\ns_add_u32 s66, s66, {XB}")
        a(f"s_cmp_eq_u32 s{sCl}, 0\ns_cselect_b32 s67, s66, {XB+8*4096}\ns_cselect_b32 s68, {XB+8*4096}, s66\ns_cselect_b64 s[70:71], -1, 0")
        a(f"v_add_u32 v{vRdM}, s66, v{vL16}\nv_add_u32 v{vRdR}, s67, v{vL16}\nv_add_u32 v{vT}, s68, v{vL16}")
        a(f"s_lshl_b32 s66, s{sJ}, 2\ns_add_u32 s66, s66, s{sHH}\ns_mul_i32 s66, s66, {KVH}")
        srd(a, sO, 6, WS_KV, KVH, 66)
        vA1, vA2, vA3 = vS, vS + 1, vS + 2
        a(f"v_lshrrev_b32 v{vTmp}, 1, v{vM}\nv_cmp_eq_u32 s[72:73], s{sHH}, v{vTmp}\nv_and_b32 v{vTmp+1}, 1, v{vM}\nv_lshlrev_b32 v{vTmp+1}, 2, v{vTmp+1}")
        a(f"v_mov_b32 v{vTmp+7}, {OOB}")
        a(f"v_cndmask_b32 v{vTmp+1}, v{vTmp+7}, v{vTmp+1}, s[72:73]")
        a(f"v_lshlrev_b32 v{vTmp+2}, 2, v{vM}")
        a(f"v_lshl_add_u32 v{vTmp+3}, v{vG}, 8, v{vTmp+2}\nv_lshl_add_u32 v{vTmp+4}, v{vG}, 5, v{vTmp+1}\nv_add_u32 v{vTmp+4}, {KV_RM}, v{vTmp+4}")
        a(f"v_cndmask_b32 v{vA1}, v{vTmp+4}, v{vTmp+3}, s[70:71]")
        a(f"s_cmp_eq_u32 s{sCl}, 0\ns_cselect_b32 s74, 64, 8\ns_cselect_b32 s77, 8, 64\ns_cselect_b32 s78, {KV_AR-KV_AM}, 0\ns_add_u32 s78, s78, {KV_AM}\ns_lshl_b32 s75, s74, 1\ns_add_u32 s76, s75, s74")
        a(f"v_cndmask_b32 v{vTmp+3}, v{vTmp+2}, v{vTmp+1}, s[70:71]\nv_add_u32 v{vTmp+3}, s78, v{vTmp+3}")
        a(f"s_lshr_b32 s79, s{sHH}, 1\ns_add_u32 s79, s79, 2\nv_cmp_eq_u32 s[72:73], s79, v{vG}\nv_cmp_eq_u32 vcc, 0, v{vG}")
        a(f"v_add_u32 v{vTmp+4}, s77, v{vTmp+3}\nv_add_u32 v{vTmp+5}, s77, v{vTmp+4}")
        a(f"v_cndmask_b32 v{vA2}, v{vTmp+7}, v{vTmp+3}, vcc\nv_cndmask_b32 v{vA2}, v{vA2}, v{vTmp+4}, s[72:73]\nv_cndmask_b32 v{vA3}, v{vTmp+7}, v{vTmp+5}, s[72:73]")
        a(f"s_and_b32 s79, s{sHH}, 1\ns_cmp_eq_u32 s79, 1\ns_cselect_b64 s[80:81], -1, 0")
        a(f"v_mov_b32 v{vS+3}, s{ONES}")
        a("s_waitcnt lgkmcnt(0)\ns_barrier")
        fV, fB1, fB2, fR = vFr, vFr + 16, vFr + 32, vFr + 48
        for k in range(4):
            a(f"ds_read_b128 {vr(fR+4*k,4)}, v{vL16} offset:{XB+8*4096+k*1024}")
        for k in range(4):
            a(f"ds_read_b128 {vr(fV+4*k,4)}, v{vRdM} offset:{4*4096+k*1024}")
            a(f"ds_read_b128 {vr(fB1+4*k,4)}, v{vRdR} offset:{k*1024}")
            a(f"ds_read_b128 {vr(fB2+4*k,4)}, v{vT} offset:{k*1024}")
        for r in range(16): a(f"v_cndmask_b32 v{fR+r}, v{fR+r}, v{vS+3}, s[64:65]")
        D1, D2 = vAcc, vAcc + 4
        for k in range(4):
            a(f"v_mfma_f32_16x16x32_bf16 {vr(D1,4)}, {vr(fV+4*k,4)}, {vr(fB1+4*k,4)}, {vr(D1,4) if k else 0}")
            a(f"v_mfma_f32_16x16x32_bf16 {vr(D2,4)}, {vr(fR+4*k,4)}, {vr(fB2+4*k,4)}, {vr(D2,4) if k else 0}")
        a("s_waitcnt vmcnt(0)")
        a.raw("L_k1_poll:")
        a(f"v_readfirstlane_b32 s79, v{vW+1}\ns_cmp_lg_u32 s79, 0\ns_cbranch_scc1 L_k1_go")
        a(f"s_sleep 2\nbuffer_load_dword v{vW+1}, v{vW}, s[{sDbg}:{sDbg+3}], 0 offen sc0 sc1\ns_waitcnt vmcnt(0)\ns_branch L_k1_poll")
        a.raw("L_k1_go:")
        a("s_nop 7")
        a(f"v_cndmask_b32 v{D2}, v{D2}, v{D2+2}, s[80:81]\nv_cndmask_b32 v{D2+1}, v{D2+1}, v{D2+3}, s[80:81]")
        for r in range(4):
            a(f"buffer_atomic_add_f32 v{D1+r}, v{vA1}, s[{sO}:{sO+3}], {'0' if r == 0 else 's'+str(73+r)} offen")
        a(f"buffer_atomic_add_f32 v{D2}, v{vA2}, s[{sO}:{sO+3}], 0 offen")
        a(f"buffer_atomic_add_f32 v{D2+1}, v{vA3}, s[{sO}:{sO+3}], 0 offen")
        T.flush(2, vT, vT2)
        a("s_endpgm")
        a.reset()
    a("L_k1_end:\ns_endpgm")
    return header(name) + a.text(), descriptor(name, 256, 256, 96)
```

```python
from common import *
K3_LDS = 4 * 3 * 5 * 1024
def gen_k3(name, ts=False):
    a = Prog()
    T = Stamps(a, ts, 1, 64, 4, 4)
    V = Regs("v", 1, 256)
    vLane = V.alloc(); vM = V.alloc(); vG = V.alloc(); vL16 = V.alloc(); vT = V.alloc(); vT2 = V.alloc()
    vMM = V.alloc(); vRM = V.alloc(); vAM = V.alloc(4); vAR = V.alloc(4); vXo = V.alloc(); vX2 = V.alloc(); vL8 = V.alloc()
    vEps = V.alloc(4, 4)
    vRaw = V.alloc(48, 4)
    vKA = V.alloc(64, 4)
    vS1 = V.alloc(16, 4)
    vO = V.alloc(40, 4)
    vRr = V.alloc(4, 2)
    vXr = V.alloc(10, 4)
    vTmp = V.alloc(8, 4)
    vAc2 = V.alloc(20, 4)
    def PQ(mt, r, n): return vr(24 * mt + r, n, "a")
    def WO(v, t): return vr(96 + 4 * (5 * v + t), 4, "a")
    def AC(mt, t):
        return (vr(196 + 20 * mt + 4 * t, 4, "a") if mt < 3 else vr(vAc2 + 4 * t, 4))
    sKV, sPQ, sWO, sX, sH, sST = 8, 12, 16, 20, 24, 28
    sWave, sJ, sI, sT, sT2 = 32, 33, 34, 35, 36
    sG = 40
    a("s_cmp_ge_u32 s2, 256\ns_cbranch_scc1 L_k3_end")
    T.stamp(0)
    a(f"s_load_dwordx2 s[4:5], s[0:1], {KA_WS}")
    a(f"s_load_dwordx2 s[6:7], s[0:1], {KA_X}")
    a(f"v_lshrrev_b32 v{vT}, 6, v0\nv_readfirstlane_b32 s{sWave}, v{vT}")
    a(f"s_and_b32 s{sJ}, s2, 7\ns_lshr_b32 s{sI}, s2, 3")
    a(f"v_and_b32 v{vLane}, 63, v0\nv_and_b32 v{vM}, 15, v0\nv_bfe_u32 v{vG}, v0, 4, 2\nv_lshlrev_b32 v{vL16}, 4, v{vLane}\nv_lshlrev_b32 v{vL8}, 3, v{vLane}")
    a(f"v_lshlrev_b32 v{vMM}, 6, v{vM}\nv_lshl_add_u32 v{vMM}, v{vG}, 4, v{vMM}")
    a(f"v_lshlrev_b32 v{vRM}, 3, v{vM}\nv_add_u32 v{vRM}, {KV_RM}, v{vRM}")
    a(f"v_mov_b32 v{vTmp}, {OOB}\nv_and_b32 v{vT}, 3, v{vM}\nv_lshrrev_b32 v{vT2}, 2, v{vM}")
    a(f"v_lshlrev_b32 v{vTmp+1}, 6, v{vT}\nv_lshl_add_u32 v{vTmp+1}, v{vG}, 4, v{vTmp+1}\nv_add_u32 v{vTmp+1}, {KV_AM}, v{vTmp+1}")
    a(f"v_lshlrev_b32 v{vTmp+2}, 3, v{vT}\nv_add_u32 v{vTmp+2}, {KV_AR}, v{vTmp+2}")
    a(f"v_cmp_eq_u32 s[48:49], 0, v{vT}\nv_cmp_ne_u32 s[50:51], 3, v{vT}")
    for q in range(4):
        a(f"v_cmp_eq_u32 vcc, {q}, v{vT2}\nv_cmp_eq_u32 s[{sG+2*q}:{sG+2*q+1}], {q}, v{vG}")
        a("s_and_b64 vcc, vcc, s[50:51]\ns_or_b64 vcc, vcc, s[48:49]")
        a(f"v_cndmask_b32 v{vAM+q}, v{vTmp}, v{vTmp+1}, vcc\nv_cndmask_b32 v{vAR+q}, v{vTmp}, v{vTmp+2}, vcc")
    a("s_waitcnt lgkmcnt(0)")
    a(f"s_mul_i32 s{sT}, s{sWave}, {8*KVH}"); srd(a, sKV, 4, WS_KV, 8 * KVH, sT)
    a(f"s_lshl_b32 s{sT}, s{sI}, 4\ns_add_u32 s{sT}, s{sT}, s{sWave}\ns_mul_i32 s{sT}, s{sT}, 4608"); srd(a, sPQ, 4, WS_PQ, 13 * 4608, sT)
    a(f"s_lshl_b32 s{sT}, s{sJ}, 2\ns_add_u32 s{sT}, s{sT}, s{sWave}\ns_mul_i32 s{sT}, s{sT}, {25*1024}"); srd(a, sWO, 4, WS_WO, 25 * 1024, sT)
    def kvload(h):
        r = vRaw + 12 * (h % 4)
        a(f"s_mov_b32 s{sT}, {h*KVH}")
        a(f"buffer_load_dwordx4 {vr(r,4)}, v{vMM}, s[{sKV}:{sKV+3}], s{sT} offen")
        a(f"buffer_load_dwordx4 {vr(r+4,4)}, v{vAM+h%4}, s[{sKV}:{sKV+3}], s{sT} offen")
        a(f"buffer_load_dwordx2 {vr(r+8,2)}, v{vRM}, s[{sKV}:{sKV+3}], s{sT} offen")
        a(f"buffer_load_dwordx2 {vr(r+10,2)}, v{vAR+h%4}, s[{sKV}:{sKV+3}], s{sT} offen")
    def pqload(mt):
        a(f"s_mov_b32 s{sT}, {mt*4*4608}")
        for pl, r in enumerate((0, 4, 10, 16)):
            a(f"buffer_load_dwordx4 {PQ(mt,r,4)}, v{vL16}, s[{sPQ}:{sPQ+3}], s{sT} offen offset:{pl*1024}")
        a(f"s_mov_b32 s{sT}, {mt*4*4608+4096}")
        a(f"buffer_load_dwordx2 {PQ(mt,22,2)}, v{vL8}, s[{sPQ}:{sPQ+3}], s{sT} offen")
    def kvbuild(h):
        r = vRaw + 12 * (h % 4); odd = h & 1; p8 = h >> 1
        for k in range(2):
            f = vKA + 8 * h + 4 * k
            mo, ro = (0, 2) if not odd else (2, 0)
            a(f"v_cvt_pk_bf16_f32 v{f+mo}, v{r+4*k}, v{r+4*k+1}\nv_cvt_pk_bf16_f32 v{f+mo+1}, v{r+4*k+2}, v{r+4*k+3}")
            a(f"v_cvt_pk_bf16_f32 v{vT}, v{r+8+2*k}, v{r+9+2*k}\nv_mov_b32 v{f+ro+1-odd}, 0")
            a(f"v_cndmask_b32 v{f+ro+odd}, 0, v{vT}, s[{sG+2*p8}:{sG+2*p8+1}]")
    for h in range(4): kvload(h)
    pqload(0)
    srd(a, sX, 6, 0, S * D * 2)
    srd(a, sH, 4, WS_H, SZ_H)
    srd(a, sST, 4, WS_ST, SZ_ST)
    a(f"s_lshl_b32 s{sT}, s{sI}, 6\ns_lshl_b32 s{sT2}, s{sWave}, 4\ns_add_u32 s{sT}, s{sT}, s{sT2}\nv_add_u32 v{vT}, s{sT}, v{vM}")
    a(f"v_mul_u32_u24 v{vXo}, 1152, v{vT}\ns_mul_i32 s{sT2}, s{sJ}, 144\nv_add_u32 v{vXo}, s{sT2}, v{vXo}")
    a(f"v_lshl_add_u32 v{vX2}, v{vG}, 3, v{vXo}\nv_add_u32 v{vX2}, 128, v{vX2}\nv_lshl_add_u32 v{vXo}, v{vG}, 4, v{vXo}")
    a(f"v_cmp_gt_u32 s[52:53], 2, v{vG}\nv_cndmask_b32 v{vX2}, v{vTmp}, v{vX2}, s[52:53]")
    vSTo = vRM
    a(f"v_mov_b32 v{vEps}, {fhex(1e-6)}\nv_mov_b32 v{vEps+1}, 0\nv_mov_b32 v{vEps+2}, 0\nv_mov_b32 v{vEps+3}, 0")
    for k in range(2): a(f"v_mov_b32 v{vO+20*k+18}, 0\nv_mov_b32 v{vO+20*k+19}, 0")
    a(f"v_lshlrev_b32 v{vTmp+3}, 6, v{vT}\ns_lshl_b32 s{sT2}, s{sJ}, 3\nv_add_u32 v{vTmp+3}, s{sT2}, v{vTmp+3}\nv_cndmask_b32 v{vT2}, v{vTmp}, v{vTmp+3}, s[{sG}:{sG+1}]")
    for h in range(4):
        kvbuild(h); kvload(h + 4)
    for mt in range(1, 4): pqload(mt)
    for k in range(25):
        if k % 4 == 0: a(f"s_mov_b32 s{sT}, {k*1024}")
        a(f"buffer_load_dwordx4 {WO(k//5,k%5)}, v{vL16}, s[{sWO}:{sWO+3}], s{sT} offen offset:{(k%4)*1024}")
        if k == 8:
            for h in range(4, 8): kvbuild(h)
    a(f"buffer_load_dwordx4 {vr(vXr,4)}, v{vXo}, s[{sX}:{sX+3}], 0 offen")
    a(f"buffer_load_dwordx4 {vr(vXr+4,4)}, v{vXo}, s[{sX}:{sX+3}], 0 offen offset:64")
    a(f"buffer_load_dwordx2 {vr(vXr+8,2)}, v{vX2}, s[{sX}:{sX+3}], 0 offen")
    boff = [0, 2, 6, 8, 12, 14, 18, 20]
    def s1_mfma(mt, h):
        ac = vS1 + 8 * (h & 1)
        return [f"v_mfma_f32_16x16x32_bf16 {vr(ac+4,4)}, {vr(vKA+8*h+4,4)}, {PQ(mt,boff[h],4)}, {vr(vEps,4)}",
                f"v_mfma_f32_16x16x32_bf16 {vr(ac,4)}, {vr(vKA+8*h,4)}, {PQ(mt,boff[h],4)}, 0"]
    def s1_valu(mt, h):
        ac = vS1 + 8 * (h & 1); o = vO + 20 * (mt & 1); rr = vRr + 2 * (h >> 2)
        L = [f"v_rcp_f32 v{ac+4}, v{ac+4}"]
        if h % 4 == 0: L += [f"v_mul_f32 v{rr}, v{ac+5}, v{ac+4}", f"v_mul_f32 v{rr+1}, v{ac+6}, v{ac+4}"]
        else: L += [f"v_fma_f32 v{rr}, v{ac+5}, v{ac+4}, v{rr}", f"v_fma_f32 v{rr+1}, v{ac+6}, v{ac+4}, v{rr+1}"]
        for r in range(4): L.append(f"v_mul_f32 v{ac+r}, v{ac+r}, v{ac+4}")
        d = o + 4 * (h >> 1) + 2 * (h & 1)
        L += [f"v_cvt_pk_bf16_f32 v{d}, v{ac}, v{ac+1}", f"v_cvt_pk_bf16_f32 v{d+1}, v{ac+2}, v{ac+3}"]
        if h % 4 == 3: L.append(f"v_cvt_pk_bf16_f32 v{o+16+(h>>2)}, v{rr}, v{rr+1}")
        return L
    def s2_mfma(mt):
        o = vO + 20 * (mt & 1)
        return [f"v_mfma_f32_16x16x32_bf16 {AC(mt,t)}, {WO(v,t)}, {vr(o+4*v,4)}, {AC(mt,t) if v else 0}" for v in range(5) for t in range(5)]
    def s1(mt, extra):
        for d in (8, 14, 20):
            a(f"v_accvgpr_mov_b32 a{24*mt+d}, a{24*mt+2}\nv_accvgpr_mov_b32 a{24*mt+d+1}, a{24*mt+3}")
        ei = 0
        for x in s1_mfma(mt, 0): a(x)
        for h in range(8):
            if h < 7:
                for x in s1_mfma(mt, h + 1): a(x)
            want = (len(extra) * (h + 1) + 7) // 8
            ex = extra[ei:want]; ei = want
            va = s1_valu(mt, h)
            if ex:
                a(ex[0]);
                for x in interleave(va, ex[1:], 1): a(x)
            else:
                for x in va: a(x)
    T.stamp(1)
    s1(0, [])
    T.stamp(2)
    for mt in range(1, 4): s1(mt, s2_mfma(mt - 1))
    for x in s2_mfma(3): a(x)
    T.stamp(3)
    own = vRaw
    for w in range(4):
        a(f"s_cmp_lg_u32 s{sWave}, {w}\ns_cbranch_scc1 L_k3_w{w}")
        a.cond_begin()
        for mt in range(4):
            for t in range(5):
                if mt == w:
                    if mt < 3:
                        for r in range(4): a(f"v_accvgpr_read_b32 v{own+4*t+r}, a{196+20*mt+4*t+r}")
                    else:
                        for r in range(4): a(f"v_mov_b32 v{own+4*t+r}, v{vAc2+4*t+r}")
                else:
                    slot = w - (1 if w > mt else 0)
                    a(f"ds_write_b128 v{vL16}, {AC(mt,t)} offset:{((mt*3+slot)*5+t)*1024}")
        a.cond_end()
        a.raw(f"L_k3_w{w}:")
    a(f"s_mul_i32 s{sT}, s{sWave}, {15*1024}\nv_add_u32 v{vL8}, s{sT}, v{vL16}")
    a("s_waitcnt lgkmcnt(0)\ns_barrier")
    rb = vKA
    for t in range(5):
        for sl in range(3):
            a(f"ds_read_b128 {vr(rb+4*(3*t+sl),4)}, v{vL8} offset:{(sl*5+t)*1024}")
    for t in range(5):
        for sl in range(3):
            for r in range(4): a(f"v_add_f32 v{own+4*t+r}, v{own+4*t+r}, v{rb+4*(3*t+sl)+r}")
    hp = vS1
    for t in range(5):
        for k in range(2):
            xd = vXr + 2 * t + k
            a(f"v_lshlrev_b32 v{vTmp+4}, 16, v{xd}\nv_and_b32 v{vTmp+5}, 0xffff0000, v{xd}")
            a(f"v_add_f32 v{own+4*t+2*k}, v{own+4*t+2*k}, v{vTmp+4}\nv_add_f32 v{own+4*t+2*k+1}, v{own+4*t+2*k+1}, v{vTmp+5}")
            a(f"v_cvt_pk_bf16_f32 v{hp+2*t+k}, v{own+4*t+2*k}, v{own+4*t+2*k+1}")
    a(f"v_cndmask_b32 v{hp+8}, 0, v{hp+8}, s[52:53]\nv_cndmask_b32 v{hp+9}, 0, v{hp+9}, s[52:53]")
    a(f"buffer_store_dwordx4 {vr(hp,4)}, v{vXo}, s[{sH}:{sH+3}], 0 offen")
    a(f"buffer_store_dwordx4 {vr(hp+4,4)}, v{vXo}, s[{sH}:{sH+3}], 0 offen offset:64")
    a(f"buffer_store_dwordx2 {vr(hp+8,2)}, v{vX2}, s[{sH}:{sH+3}], 0 offen")
    a(f"s_mov_b32 s{sT}, 0x3f803f80\nv_mov_b32 v{vTmp}, 0\nv_mov_b32 v{vTmp+1}, 0")
    for r in range(10):
        a(f"v_dot2_f32_bf16 v{vTmp}, v{hp+r}, s{sT}, v{vTmp}\nv_dot2_f32_bf16 v{vTmp+1}, v{hp+r}, v{hp+r}, v{vTmp+1}")
    xg_reduce_n(a, [vTmp, vTmp + 1], [vTmp + 2, vTmp + 3])
    a(f"buffer_store_dwordx2 {vr(vTmp,2)}, v{vT2}, s[{sST}:{sST+3}], 0 offen")
    T.flush(4, vT, vLane)
    a("L_k3_end:\ns_endpgm")
    return header(name) + a.text(), descriptor(name, 512, 256, 96 if ts else 64)
```

```python
from common import *
HB, CB = 0, 73728
K4_LDS = CB + 4608
def gen_k4(name, st_flags="", opts=None):
    opts = opts or {}
    a = Prog()
    ts = opts.get("ts")
    T = Stamps(a, ts, 2, 64, 4, 4)
    V = Regs("v", 1, 256)
    vL = V.alloc(); vL1 = V.alloc(); vH = V.alloc(); vHWe = V.alloc(); vHWo = V.alloc(); vCB = V.alloc(); vP = V.alloc()
    vT0 = V.alloc(); vT1 = V.alloc()
    vRS = V.alloc(4, 4); vNM = V.alloc(4, 4)
    vCS = V.alloc(8, 4)
    vTMP = V.alloc(8, 4)
    vPK = V.alloc(16, 4)
    vACC = V.alloc(32, 4)
    vA = V.alloc(72, 4)
    vB = V.alloc(32, 4)
    vX = vA
    vPRO = V.alloc(32, 4)
    def B(idx): return f"a[{4*idx}:{4*idx+3}]" if idx < 64 else vr(vB + 4 * (idx - 64), 4)
    def Breadop(idx, tag=None):
        return f"ds_read_b128 {B(idx)}, v{vL} offset:{idx*1024}" if idx < 64 else f"ds_read_b128 {B(idx)}, v{vL1} offset:{(idx-64)*1024}"
    sW, sH, sST, sCS, sB1, sP = 8, 12, 16, 20, 24, 28
    sWave, sJ, sI, sStream, sPo, sCnt, sT, sT2, sPs = 32, 33, 34, 35, 36, 37, 38, 39, 40

    a("s_cmp_ge_u32 s2, 256\ns_cbranch_scc1 L_k4_end")
    T.stamp(0)
    a(f"s_load_dwordx2 s[4:5], s[0:1], {KA_WS}")
    a(f"s_load_dwordx2 s[6:7], s[0:1], {KA_B1}")
    a(f"v_lshrrev_b32 v{vT0}, 6, v0")
    a(f"v_readfirstlane_b32 s{sWave}, v{vT0}")
    a(f"s_and_b32 s{sJ}, s2, 7\ns_lshr_b32 s{sI}, s2, 3")
    a(f"v_and_b32 v{vT1}, 63, v0\nv_lshlrev_b32 v{vL}, 4, v{vT1}\nv_add_u32 v{vL1}, 0x10000, v{vL}")
    a(f"v_and_b32 v{vTMP}, 15, v0\nv_bfe_u32 v{vTMP+1}, v0, 4, 2")
    a(f"s_lshl_b32 s{sT}, s{sWave}, 4\nv_add_u32 v{vH}, s{sT}, v{vTMP}\nv_mul_u32_u24 v{vH}, 1152, v{vH}")
    a(f"v_lshl_add_u32 v{vH}, v{vTMP+1}, 4, v{vH}")
    a(f"v_lshlrev_b32 v{vTMP+2}, 6, v{vTMP}\nv_lshl_add_u32 v{vTMP+2}, v{vTMP+1}, 4, v{vTMP+2}")
    a(f"s_mul_i32 s{sT}, s{sJ}, 576\ns_mul_i32 s{sT2}, s{sWave}, 144\ns_add_u32 s{sT}, s{sT}, s{sT2}")
    a(f"v_lshlrev_b32 v{vTMP+3}, 2, v{vT1}\nv_add_u32 v{vTMP+3}, s{sT}, v{vTMP+3}")
    a(f"v_lshlrev_b32 v{vTMP+4}, 1, v{vTMP+3}\nv_lshlrev_b32 v{vTMP+3}, 2, v{vTMP+3}")
    a("s_waitcnt lgkmcnt(0)")
    T.stamp(1)
    a(f"s_lshl_b32 s{sT}, s{sI}, 12"); srd(a, sST, 4, WS_ST, 4096, sT)
    srd(a, sCS, 4, WS_CS, SZ_CS)
    srd(a, sB1, 6, 0, F * 2)
    a(f"s_mul_i32 s{sT}, s{sI}, {64*1152}"); srd(a, sH, 4, WS_H, 64 * 1152, sT)
    a(f"s_lshl_b32 s{sT}, s{sJ}, 2\ns_add_u32 s{sT}, s{sT}, s{sWave}\ns_mul_i32 s{sT}, s{sT}, {324*1024}")
    srd(a, sW, 4, WS_W, 324 * 1024, sT)
    for mt in range(4):
        a(f"buffer_load_dwordx4 {vr(vPRO+4*mt,4)}, v{vTMP+2}, s[{sST}:{sST+3}], 0 offen offset:{mt*1024}")
    for p in range(3):
        a(f"s_mov_b32 s{sT}, {p*F*4}")
        a(f"buffer_load_dwordx4 {vr(vPRO+16+4*p,4)}, v{vTMP+3}, s[{sCS}:{sCS+3}], s{sT} offen")
    a(f"buffer_load_dwordx2 {vr(vPRO+28,2)}, v{vTMP+4}, s[{sB1}:{sB1+3}], 0 offen")
    a(f"s_lshl_b32 s{sT}, s{sWave}, 10")
    for s in range(18):
        a(f"s_add_u32 m0, s{sT}, {HB + s*(4096-64)}")
        a(f"buffer_load_dwordx4 v{vH}, s[{sH}:{sH+3}], 0 offen offset:{s*64} lds", tag="hdma")
    a(f"s_mov_b32 s{sStream}, 0")
    def aload(q):
        L = [(f"buffer_load_dwordx4 {vr(vA+12*q+4*ss,4)}, v{vL}, s[{sW}:{sW+3}], s{sStream} offen offset:{ss*1024}", f"A{q}") for ss in range(3)]
        L.append(f"s_add_u32 s{sStream}, s{sStream}, 3072")
        return L
    def put(x):
        if isinstance(x, tuple): a(x[0], tag=x[1])
        else: a(x)
    for q in range(5):
        for x in aload(q): put(x)
    T.stamp(2)
    a(f"s_mul_i32 s{sT}, s{sJ}, {SZ_P//8}\ns_mul_i32 s{sT2}, s{sI}, {72*1024}\ns_add_u32 s{sT}, s{sT}, s{sT2}")
    srd(a, sP, 4, WS_P, 72 * 1024, sT)
    a(f"s_mul_i32 s{sT}, s{sWave}, 9")
    a(f"s_add_u32 s{sT2}, s{sT}, 1\ns_lshr_b32 s{sPo}, s{sT2}, 1\ns_lshl_b32 s{sPo}, s{sPo}, 12")
    a(f"s_lshr_b32 s{sPs}, s{sWave}, 1\ns_mul_i32 s{sPs}, s{sPs}, 9\ns_add_u32 s{sPs}, s{sPs}, 4\ns_lshl_b32 s{sPs}, s{sPs}, 12")
    a(f"s_and_b32 s{sCnt}, s{sWave}, 1\ns_lshl_b32 s{sCnt}, s{sCnt}, 3\ns_add_u32 s{sPs}, s{sPs}, s{sCnt}")
    a(f"s_lshr_b32 s{sCnt}, s{sT}, 1\ns_lshl_b32 s{sCnt}, s{sCnt}, 12\ns_and_b32 s{sT}, s{sT}, 1\ns_lshl_b32 s{sT}, s{sT}, 3\ns_add_u32 s{sCnt}, s{sCnt}, s{sT}")
    a(f"v_add_u32 v{vHWe}, s{sCnt}, v{vL}")
    a(f"s_lshr_b32 s{sCnt}, s{sT2}, 1\ns_lshl_b32 s{sCnt}, s{sCnt}, 12\ns_and_b32 s{sT2}, s{sT2}, 1\ns_lshl_b32 s{sT2}, s{sT2}, 3\ns_add_u32 s{sCnt}, s{sCnt}, s{sT2}")
    a(f"v_add_u32 v{vHWo}, s{sCnt}, v{vL}")
    a(f"s_mul_i32 s{sT}, s{sWave}, 1152\ns_add_u32 s{sT}, s{sT}, {CB}")
    a(f"v_lshlrev_b32 v{vCB}, 5, v{vTMP+1}\nv_add_u32 v{vCB}, s{sT}, v{vCB}")
    a(f"v_lshlrev_b32 v{vTMP+5}, 5, v{vT1}\nv_add_u32 v{vTMP+5}, s{sT}, v{vTMP+5}")
    a(f"s_mov_b32 s{sT}, {hex(f2u(1.0/576))}\ns_mov_b32 s{sT2}, {hex(f2u(1e-5))}")
    for mt in range(4):
        b = vPRO + 4 * mt
        a(f"v_add_f32 v{b}, v{b}, v{b+2}\nv_add_f32 v{b+1}, v{b+1}, v{b+3}")
    T.stamp(3)
    xg_reduce_n(a, [vPRO + 4 * mt + k for mt in range(4) for k in range(2)], [vPRO + 4 * mt + 2 + k for mt in range(4) for k in range(2)])
    for mt in range(4):
        b = vPRO + 4 * mt
        a(f"v_mul_f32 v{b}, s{sT}, v{b}\nv_mul_f32 v{b+1}, s{sT}, v{b+1}")
        a(f"v_fma_f32 v{b+1}, -v{b}, v{b}, v{b+1}\nv_max_f32 v{b+1}, 0, v{b+1}\nv_add_f32 v{b+1}, s{sT2}, v{b+1}")
        a(f"v_rsq_f32 v{vRS+mt}, v{b+1}")
    for mt in range(4):
        a(f"v_mul_f32 v{vNM+mt}, -v{vPRO+4*mt}, v{vRS+mt}")
    c = vPRO + 16
    for r in range(4):
        a(f"v_add_f32 v{c+r}, v{c+r}, v{c+4+r}\nv_add_f32 v{c+r}, v{c+r}, v{c+8+r}")
    a(f"v_lshlrev_b32 v{c+4}, 16, v{c+12}\nv_and_b32 v{c+5}, 0xffff0000, v{c+12}\nv_lshlrev_b32 v{c+6}, 16, v{c+13}\nv_and_b32 v{c+7}, 0xffff0000, v{c+13}")
    a(f"v_cmp_gt_u32 vcc, 36, v{vT1}\ns_and_saveexec_b64 s[42:43], vcc")
    a(f"ds_write_b128 v{vTMP+5}, {vr(c,4)}\nds_write_b128 v{vTMP+5}, {vr(c+4,4)} offset:16")
    a("s_mov_b64 exec, s[42:43]")
    a("s_waitcnt lgkmcnt(0)")
    T.stamp(4)
    a.wait_vm("hdma")
    a("s_barrier")

    def mfmas(X):
        L = []
        for q in range(6):
            for mt in range(4):
                for ss in range(3):
                    s = 3 * q + ss
                    acc = vr(vACC + 16 * X + 4 * mt, 4)
                    L.append(f"v_mfma_f32_16x16x32_bf16 {acc}, {vr(vA+12*q+4*ss,4)}, {B(4*s+mt)}, {acc if s else 0}")
        return L
    def breads(q): return [Breadop(4 * (3 * q + ss) + mt) for mt in range(4) for ss in range(3)]
    def emit_tile(X, fill, first=False):
        M = mfmas(X)
        nf = len(fill); fi = 0
        for q in range(6):
            grp = M[12 * q:12 * q + 12]
            own = aload((q - 1) % 6)
            if first and q < 5: own = interleave(breads(q + 1), own, 0)
            lo = 4 if q == 0 else 0
            want = (nf * (12 * (q + 1) - 4) + 67) // 68
            ex = fill[fi:want]; fi = want
            if q == 0:
                seq = interleave(grp[:4], own[:] if not first else own[:5], 0) + interleave(grp[4:], (own[5:] if first else []) + ex, 0)
            else:
                seq = interleave(grp, merge(own, ex), 0)
            a.wait_vm(f"A{q}")
            for x in seq: put(x)
        assert fi >= nf
    def merge(x, y):
        if len(x) < len(y): x, y = y, x
        return interleave(x, y, 0) if x else []
    def cbread(off): return [f"ds_read_b128 {vr(vCS,4)}, v{vCB} offset:{off}", f"ds_read_b128 {vr(vCS+4,4)}, v{vCB} offset:{off+16}"]
    def epi1(X, vHW, cboff):
        L = []
        for mt in range(4):
            ac = vACC + 16 * X + 4 * mt; t = vTMP + 4 * (mt & 1)
            for r in range(4): L.append(f"v_fma_f32 v{t+r}, v{vNM+mt}, v{vCS+r}, v{vCS+4+r}")
            if mt == 3 and cboff is not None: L += cbread(cboff)
            for r in range(4): L.append(f"v_fma_f32 v{t+r}, v{ac+r}, v{vRS+mt}, v{t+r}")
            for r in range(4): L.append(f"v_mul_f32 v{t+r}, v{t+r}, abs(v{t+r})")
            L.append(f"v_cvt_pk_bf16_f32 v{t}, v{t}, v{t+1}"); L.append(f"v_cvt_pk_bf16_f32 v{t+1}, v{t+2}, v{t+3}")
            L.append(f"v_pk_max_i16 v{t}, v{t}, 0"); L.append(f"v_pk_max_i16 v{t+1}, v{t+1}, 0")
            L.append(f"ds_write_b64 v{vHW}, {vr(t,2)} offset:{mt*1024}")
        return L
    def epi2(X, odd):
        L = []
        for mt in range(4):
            ac = vACC + 16 * X + 4 * mt; p = vPK + 4 * mt + 2 * odd
            L.append(f"v_cvt_pk_bf16_f32 v{p}, v{ac}, v{ac+1}"); L.append(f"v_cvt_pk_bf16_f32 v{p+1}, v{ac+2}, v{ac+3}")
            if odd: L.append(f"buffer_store_dwordx4 {vr(vPK+4*mt,4)}, v{vL}, s[{sP}:{sP+3}], s{sPo} offen offset:{mt*1024}{st_flags}")
        if odd: L.append(f"s_add_u32 s{sPo}, s{sPo}, 4096")
        return L
    T.stamp(5)
    if ts: a("s_waitcnt lgkmcnt(0)")
    for x in breads(0): a(x)
    for x in cbread(0): a(x)
    emit_tile(0, [], first=True)
    a("s_waitcnt lgkmcnt(0)\ns_barrier")
    T.stamp(6)
    if ts: a("s_waitcnt lgkmcnt(0)")
    a(f"s_mov_b32 s{sCnt}, 0")
    def body1(it):
        emit_tile(1, epi1(0, vHWe, 128) + [f"v_add_u32 v{vHWe}, 0x1000, v{vHWe}"])
        emit_tile(0, epi1(1, vHWo, 256) + [f"v_add_u32 v{vHWo}, 0x1000, v{vHWo}", f"v_add_u32 v{vCB}, 0x100, v{vCB}"])
    a.loop("L_k4_p1", 4, body1, f"s_add_u32 s{sCnt}, s{sCnt}, 1\ns_cmp_lt_u32 s{sCnt}, 4\ns_cbranch_scc1 L_k4_p1")
    for x in epi1(0, vHWe, None): a(x)
    a("s_waitcnt lgkmcnt(0)\ns_barrier")
    T.stamp(7)
    if ts: a("s_waitcnt lgkmcnt(0)")
    for x in breads(0): a(x)
    emit_tile(0, [], first=True)
    a(f"s_mov_b32 s{sCnt}, 0")
    def body2(it):
        emit_tile(1, epi2(0, 0))
        emit_tile(0, epi2(1, 1))
    a.loop("L_k4_p2", 4, body2, f"s_add_u32 s{sCnt}, s{sCnt}, 1\ns_cmp_lt_u32 s{sCnt}, 4\ns_cbranch_scc1 L_k4_p2")
    T.stamp(8)
    for mt in range(4):
        ac = vACC + 4 * mt; p = vPK + 4 * mt
        a(f"v_cvt_pk_bf16_f32 v{p}, v{ac}, v{ac+1}\nv_cvt_pk_bf16_f32 v{p+1}, v{ac+2}, v{ac+3}")
        a(f"buffer_store_dwordx2 {vr(p,2)}, v{vL}, s[{sP}:{sP+3}], s{sPs} offen offset:{mt*1024}{st_flags}")
    T.flush(9, vT0, vT1)
    a("L_k4_end:\ns_endpgm")
    return header(name) + a.text(), descriptor(name, 512, 256, 96 if ts else 64)
```

```python
from common import *
def gen_k5(name, ts=False):
    a = Prog()
    T = Stamps(a, ts, 3, 64, 4, 4)
    a("s_cmp_ge_u32 s2, 576\ns_cbranch_scc1 L_k5_end")
    T.stamp(0)
    a(f"s_load_dwordx2 s[4:5], s[0:1], {KA_WS}")
    a(f"s_load_dwordx2 s[6:7], s[0:1], {KA_OUT}")
    a(f"s_load_dwordx2 s[8:9], s[0:1], {KA_B2}")
    a("s_mul_i32 s10, s2, 3641\ns_lshr_b32 s10, s10, 16")
    a("s_mul_i32 s11, s10, 18\ns_sub_u32 s11, s2, s11")
    a("v_lshlrev_b32 v1, 4, v0")
    a("s_lshl_b32 s12, s2, 12")
    a("v_add_u32 v1, s12, v1")
    a("v_lshrrev_b32 v2, 6, v0\nv_lshlrev_b32 v2, 4, v2\nv_and_b32 v3, 15, v0\nv_add_u32 v2, v2, v3")
    a("s_lshl_b32 s13, s10, 6\nv_add_u32 v2, s13, v2\nv_mul_u32_u24 v2, 1152, v2")
    a("v_bfe_u32 v3, v0, 4, 2\nv_lshlrev_b32 v3, 4, v3\ns_lshl_b32 s13, s11, 6\nv_add_u32 v3, s13, v3")
    a("v_add_u32 v2, v2, v3")
    a("s_waitcnt lgkmcnt(0)")
    srd(a, 16, 4, WS_P, SZ_P)
    srd(a, 20, 4, WS_H, SZ_H)
    srd(a, 24, 8, 0, D * 2)
    srd(a, 28, 6, 0, S * D * 2)
    PL = SZ_P // 8
    for j in range(8):
        a(f"s_mov_b32 s33, {j*PL}") if j else None
        a(f"buffer_load_dwordx4 v[{8+4*j}:{11+4*j}], v1, s[16:19], {'s33' if j else '0'} offen")
    a("buffer_load_dwordx4 v[40:43], v2, s[20:23], 0 offen")
    a("buffer_load_dwordx4 v[44:47], v3, s[24:27], 0 offen")
    for j in range(8):
        for d in range(4):
            src = 8 + 4 * j + d
            if j == 0:
                a(f"v_lshlrev_b32 v{48+2*d}, 16, v{src}")
                a(f"v_and_b32 v{49+2*d}, 0xffff0000, v{src}")
            else:
                a(f"v_lshlrev_b32 v56, 16, v{src}")
                a(f"v_and_b32 v57, 0xffff0000, v{src}")
                a(f"v_add_f32 v{48+2*d}, v{48+2*d}, v56")
                a(f"v_add_f32 v{49+2*d}, v{49+2*d}, v57")
    for base in (44, 40):
        for d in range(4):
            a(f"v_lshlrev_b32 v56, 16, v{base+d}")
            a(f"v_and_b32 v57, 0xffff0000, v{base+d}")
            a(f"v_add_f32 v{48+2*d}, v{48+2*d}, v56")
            a(f"v_add_f32 v{49+2*d}, v{49+2*d}, v57")
    for d in range(4):
        a(f"v_cvt_pk_bf16_f32 v{60+d}, v{48+2*d}, v{49+2*d}")
    a("buffer_store_dwordx4 v[60:63], v2, s[28:31], 0 offen")
    T.flush(1, 1, 2)
    a("L_k5_end:\ns_endpgm")
    return header(name) + a.text(), descriptor(name, 64, 64, 96 if ts else 48)
```

```python
import sys
from common import *
from k1 import gen_k1, K1_LDS
from k3 import gen_k3, K3_LDS
from k4 import gen_k4, K4_LDS
from k5 import gen_k5
NAME = "sequential_preLN__linear_attn_block__dense_activation_squared_relu__prompt"
def dbg_kernel():
    a = Prog()
    a("s_cmp_ge_u32 s2, 1\ns_cbranch_scc1 L_dbg_end")
    a(f"s_load_dwordx4 s[4:7], s[0:1], {KA_DBG}")
    a("s_waitcnt lgkmcnt(0)")
    srd(a, 8, 6, WS_TS, 4 << 20); srd(a, 12, 4, 0, 256)
    tab = [(0,0),(0,1),(0,2),(1,0),(1,1),(1,3),(1,4),(2,0),(2,5),(2,6),(2,7),(2,8),(2,9),(3,0),(3,1),(0,0)]
    a("v_mov_b32 v1, 0")
    for l, (k, sl) in enumerate(tab):
        a(f"s_mov_b32 s20, {k*(1<<20) + 100*8*64 + 4*sl}\nv_writelane_b32 v1, s20, {l}")
    a("buffer_load_dword v2, v1, s[8:11], 0 offen")
    a("v_readfirstlane_b32 s20, v2\nv_subrev_u32 v2, s20, v2\nv_lshlrev_b32 v3, 2, v0")
    a("buffer_store_dword v2, v3, s[12:15], 0 offen")
    a("L_dbg_end:\ns_endpgm")
    return a.text()
def build(opts):
    ref = open(f"cdna_kernels/{NAME}.s.ref").read().split("\n")
    head = [l for l in ref if l.startswith(";") and "@launch" not in l and "Override launch" not in l and "grid=ceil" not in l and l.startswith("; ") and not l.startswith(";    ;")]
    head = [l for l in ref[:12]]
    ks = [("qkv_kernel", gen_k1("qkv_kernel", opts.get("sw_flags", ""), opts.get("ts")), 256, 512, K1_LDS),
          ("attn_kernel", gen_k3("attn_kernel", opts.get("ts")), 256, 256, K3_LDS),
          ("ffn_kernel", gen_k4("ffn_kernel", opts.get("p_flags", ""), opts), 256, 256, K4_LDS),
          ("reduce_kernel", gen_k5("reduce_kernel", opts.get("ts")), 576, 256, 0)]
    out = list(head)
    for n, _, g, b, l in ks: out.append(f"; @launch kernel={n} grid=({g},1,1) block=({b},1,1) lds={l}")
    if opts.get("dbgk"):
        out.append("; @launch kernel=dbg_kernel grid=(1,1,1) block=(64,1,1) lds=0")
    for k in range(opts.get("dummy", 0)): out.append("; @launch kernel=dummy_kernel grid=(256,1,1) block=(256,1,1) lds=0")
    out.append('.amdgcn_target "amdgcn-amd-amdhsa--gfx950"')
    txt = "\n".join(out) + "\n"
    for n, (t, d), *_ in ks: txt += t
    if opts.get("dummy"): txt += header("dummy_kernel") + "  s_endpgm\n"
    if opts.get("dbgk"): txt += header("dbg_kernel") + dbg_kernel()
    for n, (t, d), *_ in ks: txt += d
    if opts.get("dummy"): txt += descriptor("dummy_kernel", 8, 8, 16)
    if opts.get("dbgk"): txt += descriptor("dbg_kernel", 32, 32, 48)
    return txt
if __name__ == "__main__":
    opts = {}
    outp = f"cdna_kernels/{NAME}.s"
    for x in sys.argv[1:]:
        k, v = x.split("=", 1)
        if k == "out": outp = v
        else: opts[k] = int(v) if v.isdigit() else (" " + v.replace("+", " ") if k.endswith("flags") else v)
    open(outp, "w").write(build(opts))
```

```python
from common import *
K1_LDS = 163840
CH = 18432
XB = CH

def gen_sw(a, st_flags, T, ldf):
    sJ, sN, sT, sT2, sCb, sTh, sLds = 32, 33, 34, 35, 36, 37, 38
    sSrc, sDst, sAux = 8, 12, 16
    ONES = 39
    sD = 40
    vLane, vOff, vRd, vT, vT2, vL16 = 1, 2, 3, 8, 9, 10
    vAcc = 12
    vF = 16
    a(f"s_load_dwordx2 s[4:5], s[0:1], {KA_WS}")
    a(f"s_load_dwordx4 s[20:23], s[0:1], {KA_W1}")
    a(f"s_load_dwordx2 s[24:25], s[0:1], {KA_W2}")
    a(f"s_load_dwordx2 s[26:27], s[0:1], {KA_WO}")
    a(f"s_load_dwordx2 s[28:29], s[0:1], {KA_DBG}")
    a(f"v_lshrrev_b32 v{vT}, 6, v0\nv_readfirstlane_b32 s{sT}, v{vT}")
    a(f"s_and_b32 s{sJ}, s2, 7\ns_lshr_b32 s{sN}, s2, 3\ns_lshl_b32 s{sN}, s{sN}, 3\ns_add_u32 s{sN}, s{sN}, s{sT}")
    a(f"s_mul_i32 s{sLds}, s{sT}, 20480")
    a(f"v_and_b32 v{vLane}, 63, v0\nv_lshlrev_b32 v{vL16}, 4, v{vLane}")
    a("s_waitcnt lgkmcnt(0)")
    a(f"s_cmp_ge_u32 s{sN}, 54\ns_cbranch_scc1 L_sw_misc")
    a(f"s_cmp_ge_u32 s{sN}, 27\ns_cselect_b32 s44, 1, 0\ns_cselect_b32 s{sT}, 27, 0\ns_sub_u32 s{sN}, s{sN}, s{sT}")
    a(f"s_mul_i32 s{sCb}, s{sN}, 86\ns_lshr_b32 s{sCb}, s{sCb}, 8\ns_mul_i32 s{sT}, s{sCb}, 3\ns_sub_u32 s{sTh}, s{sN}, s{sT}")
    srd(a, sDst, 4, WS_W, SZ_W)
    for tt in range(4):
        a(f"s_lshl_b32 s{sT}, s{sCb}, 2\ns_add_u32 s{sT}, s{sT}, {tt}")
        a(f"s_mul_i32 s{sT2}, s{sT}, 57\ns_lshr_b32 s{sT2}, s{sT2}, 9")
        a(f"s_mul_i32 s45, s{sT2}, 9\ns_sub_u32 s{sT}, s{sT}, s45")
        a(f"s_and_b32 s45, s{sT2}, s44\ns_cmp_eq_u32 s{sT}, 0\ns_cselect_b32 s46, 8, -1\ns_mul_i32 s45, s45, s46\ns_add_u32 s{sT}, s{sT}, s45")
        a(f"s_mul_i32 s{sT}, s{sT}, 18\ns_mul_i32 s{sT2}, s{sT2}, 324\ns_add_u32 s{sT}, s{sT}, s{sT2}")
        a(f"s_mul_i32 s{sT2}, s{sJ}, 1296\ns_add_u32 s{sT}, s{sT}, s{sT2}\ns_mul_i32 s{sT2}, s44, 162\ns_add_u32 s{sT}, s{sT}, s{sT2}")
        a(f"s_mul_i32 s{sT2}, s{sTh}, 6\ns_add_u32 s{sT}, s{sT}, s{sT2}\ns_lshl_b32 s{sD+tt}, s{sT}, 10")
    a(f"s_mov_b32 s{ONES}, 0x3f803f80")
    a("s_cmp_eq_u32 s44, 1\ns_cbranch_scc1 L_sw_w2")
    common_tail = []
    for job in ("w1", "w2"):
        b = Prog() if False else a
        if job == "w2": a("L_sw_w2:")
        RS = 9216 if job == "w1" else 1152
        if job == "w1":
            a(f"s_mul_i32 s{sT}, s{sTh}, {192*RS}\ns_mul_i32 s{sT2}, s{sJ}, 1152\ns_add_u32 s{sT}, s{sT}, s{sT2}\ns_lshl_b32 s{sT2}, s{sCb}, 7\ns_add_u32 s{sT}, s{sT}, s{sT2}")
            a(f"s_sub_u32 s47, {D*F*2}, s{sT}")
            srd(a, sSrc, 20, 0, 0, sT)
        else:
            a(f"s_mul_i32 s{sT}, s{sJ}, 576\ns_mul_i32 s{sT2}, s{sTh}, 192\ns_add_u32 s{sT}, s{sT}, s{sT2}\ns_mul_i32 s{sT}, s{sT}, {RS}\ns_lshl_b32 s{sT2}, s{sCb}, 7\ns_add_u32 s{sT}, s{sT}, s{sT2}")
            a(f"s_sub_u32 s47, {D*F*2}, s{sT}")
            srd(a, sSrc, 24, 0, 0, sT)
        a(f"s_mov_b32 s{sSrc+2}, s47")
        a(f"v_lshrrev_b32 v{vT}, 3, v{vLane}\nv_mul_u32_u24 v{vOff}, {RS}, v{vT}")
        a(f"v_bfe_u32 v{vT}, v{vLane}, 4, 1\nv_lshlrev_b32 v{vT}, {1 if job=='w1' else 2}, v{vT}\nv_and_b32 v{vT2}, 7, v{vLane}\nv_xor_b32 v{vT}, v{vT}, v{vT2}")
        if job == "w1":
            a(f"v_xor_b32 v{vT2}, 4, v{vT}\nv_lshl_add_u32 v7, v{vT2}, 4, v{vOff}")
        a(f"v_lshl_add_u32 v{vOff}, v{vT}, 4, v{vOff}")
        def dma(u):
            for pc in range(4):
                a(f"s_add_u32 m0, s{sLds}, {(u % 5)*4096 + pc*1024}")
                a(f"s_mov_b32 s{sT}, {(u*32 + pc*8)*RS}")
                vo = 7 if (job == "w1" and pc & 1) else vOff
                a(f"buffer_load_dwordx4 v{vo}, s[{sSrc}:{sSrc+3}], s{sT} offen{ldf} lds", tag=f"{job}u{u}")
        for u in range(5): dma(u)
        a(f"v_bfe_u32 v{vT}, v{vLane}, 2, 2")
        a(f"v_lshrrev_b32 v{vT2}, 4, v{vLane}")
        if job == "w1":
            a(f"v_lshl_add_u32 v11, v{vT2}, 3, v{vT}\nv_lshlrev_b32 v11, 7, v11")
            a(f"v_lshrrev_b32 v{vT}, 1, v{vT}\nv_and_b32 v{vT2}, 1, v{vT2}\nv_lshl_or_b32 v{vT}, v{vT2}, 1, v{vT}")
            a(f"v_and_b32 v{vT2}, 3, v{vLane}\nv_lshl_add_u32 v11, v{vT2}, 3, v11\nv_add_u32 v11, s{sLds}, v11")
            for tt in range(4):
                a(f"v_xor_b32 v{vT2}, {tt}, v{vT}\nv_lshl_add_u32 v{vRd+tt}, v{vT2}, 5, v11")
            hfo = 512
        else:
            a(f"v_lshl_add_u32 v11, v{vT2}, 2, v{vT}\nv_lshlrev_b32 v11, 7, v11\nv_add_u32 v11, s{sLds}, v11")
            a(f"v_lshrrev_b32 v{vT}, 1, v{vT}\nv_lshlrev_b32 v{vT}, 2, v{vT}\nv_and_b32 v{vT2}, 3, v{vLane}\nv_xor_b32 v{vT}, v{vT}, v{vT2}")
            for tt in range(4):
                a(f"v_xor_b32 v{vT2}, {4*(tt>>1)}, v{vT}\nv_lshl_add_u32 v{vRd+tt}, v{vT2}, 4, v11")
                if tt & 1: a(f"v_add_u32 v{vRd+tt}, 8, v{vRd+tt}")
            hfo = 2048
        if job == "w1":
            for tt in range(4): a(f"v_mov_b32 v{vAcc+tt}, 0")
        for u in range(6):
            a.wait_vm(f"{job}u{u}")
            f0 = vF + 16 * (u & 1)
            for tt in range(4):
                for hf in range(2):
                    a(f"ds_read_b64_tr_b16 {vr(f0+4*tt+2*hf,2)}, v{vRd+tt} offset:{(u%5)*4096 + hf*hfo}")
            if u == 0:
                a("s_waitcnt lgkmcnt(0)"); dma(5)
            for tt in range(4):
                a(f"buffer_store_dwordx4 {vr(f0+4*tt,4)}, v{vL16}, s[{sDst}:{sDst+3}], s{sD+tt} offen offset:{(u%4)*1024}{st_flags}")
            if u == 3:
                for tt in range(4): a(f"s_add_u32 s{sD+tt}, s{sD+tt}, 4096")
            if job == "w1":
                for d in range(4):
                    for tt in range(4):
                        a(f"v_dot2_f32_bf16 v{vAcc+tt}, v{f0+4*tt+d}, s{ONES}, v{vAcc+tt}")
        if job == "w1":
            xg_reduce_n(a, [vAcc + t for t in range(4)], [vF + t for t in range(4)])
            a(f"v_lshrrev_b32 v{vT2}, 4, v{vLane}")
            for tt in range(1, 4):
                a(f"v_cmp_eq_u32 vcc, {tt}, v{vT2}\nv_cndmask_b32 v{vAcc}, v{vAcc}, v{vAcc+tt}, vcc")
            srd(a, sAux, 4, WS_CS, SZ_CS)
            a(f"s_mul_i32 s{sT}, s{sTh}, {F}\ns_mul_i32 s{sT2}, s{sJ}, 576\ns_add_u32 s{sT}, s{sT}, s{sT2}\ns_lshl_b32 s{sT2}, s{sCb}, 6\ns_add_u32 s{sT}, s{sT}, s{sT2}\ns_lshl_b32 s{sT}, s{sT}, 2")
            a(f"v_lshlrev_b32 v{vT}, 2, v{vLane}")
            a(f"buffer_store_dword v{vAcc}, v{vT}, s[{sAux}:{sAux+3}], s{sT} offen{st_flags}")
        T.flush(1, 1, 2)
        a("s_endpgm")
        a.reset()
    a("L_sw_misc:")
    a(f"s_cmp_eq_u32 s{sN}, 54\ns_cbranch_scc1 L_sw_zero")
    a(f"s_cmp_lt_u32 s{sN}, 56\ns_cbranch_scc1 L_k1_end")
    a(f"s_and_b32 s{sT}, s{sN}, 1\ns_cmp_eq_u32 s{sT}, 1\ns_cbranch_scc1 L_k1_end")
    sG = 36
    a(f"s_sub_u32 s{sG}, s{sN}, 56\ns_lshr_b32 s{sG}, s{sG}, 1")
    a(f"s_mul_i32 s{sT}, s{sG}, {144*1152}\ns_mul_i32 s{sT2}, s{sJ}, 144\ns_add_u32 s{sT}, s{sT}, s{sT2}")
    a(f"s_sub_u32 s47, {D*D*2}, s{sT}\ns_min_u32 s47, s47, {144*1152}")
    srd(a, sSrc, 26, 0, 0, sT)
    a(f"s_mov_b32 s{sSrc+2}, s47")
    a(f"s_lshl_b32 s{sT}, s{sJ}, 2\ns_add_u32 s{sT}, s{sT}, s{sG}\ns_mul_i32 s{sT}, s{sT}, {25*1024}")
    srd(a, sDst, 4, WS_WO, 25 * 1024, sT)
    a(f"v_mul_u32_u24 v{vT}, 57, v{vLane}\nv_lshrrev_b32 v{vT}, 9, v{vT}\nv_mul_u32_u24 v{vT2}, 9, v{vT}\nv_sub_u32 v7, v{vLane}, v{vT2}")
    a(f"v_mul_u32_u24 v{vOff}, 1152, v{vT}\nv_lshl_add_u32 v{vOff}, v7, 4, v{vOff}")
    a(f"v_mov_b32 v11, {7*1152+16}\nv_mov_b32 v12, {8*1152+16-144}")
    for n in range(21):
        a(f"s_add_u32 m0, s{sLds}, {n*1024}")
        a(f"buffer_load_dwordx4 v{vOff}, s[{sSrc}:{sSrc+3}], 0 offen lds", tag="wo")
        if n < 20:
            a(f"v_cmp_eq_u32 vcc, 8, v7\nv_add_u32 v7, 1, v7\nv_cndmask_b32 v{vT}, v11, v12, vcc\nv_cndmask_b32 v7, v7, 0, vcc\nv_add_u32 v{vOff}, v{vOff}, v{vT}")
    a(f"v_bfe_u32 v{vT}, v{vLane}, 2, 2\nv_lshrrev_b32 v{vT2}, 4, v{vLane}")
    a(f"v_lshl_add_u32 v11, v{vT2}, 2, v{vT}\nv_mul_u32_u24 v11, 144, v11\nv_add_u32 v11, s{sLds}, v11")
    a(f"v_lshrrev_b32 v12, 1, v{vT2}\nv_and_b32 v13, 2, v{vT}\nv_add_u32 v12, v12, v13\nv_mul_u32_u24 v12, 36, v12")
    a(f"v_and_b32 v13, 1, v{vT2}\nv_lshl_add_u32 v12, v13, 1, v12\nv_and_b32 v13, 1, v{vT}\nv_add3_u32 v12, v12, v13, 16")
    a(f"v_mul_u32_u24 v12, 144, v12\nv_add_u32 v12, s{sLds}, v12")
    a(f"v_and_b32 v13, 3, v{vLane}")
    a(f"v_lshl_add_u32 v3, v13, 4, v11\nv_lshl_add_u32 v4, v13, 3, v11\nv_lshl_add_u32 v5, v13, 4, v12\nv_lshl_add_u32 v6, v13, 3, v12")
    a.wait_vm("wo")
    k = 0
    for v in range(5):
        for t in range(5):
            f0 = vF + 4 * (k % 8)
            col = (64 * (t >> 1) + 8 * (t & 1)) if t < 4 else 128
            if v < 4:
                ad = 3 if t < 4 else 4
                for hf in range(2):
                    a(f"ds_read_b64_tr_b16 {vr(f0+2*hf,2)}, v{ad} offset:{(36*v+20*hf)*144+col}")
            else:
                ad = 5 if t < 4 else 6
                a(f"ds_read_b64_tr_b16 {vr(f0,2)}, v{ad} offset:{col}")
                a(f"v_mov_b32 v{f0+2}, 0\nv_mov_b32 v{f0+3}, 0")
            if k % 4 == 0: a(f"s_mov_b32 s{sT}, {k*1024}")
            a(f"buffer_store_dwordx4 {vr(f0,4)}, v{vL16}, s[{sDst}:{sDst+3}], s{sT} offen offset:{(k%4)*1024}{st_flags}")
            k += 1
    T.flush(1, 1, 2)
    a("s_endpgm")
    a.reset()
    a("L_sw_zero:")
    a(f"s_mul_i32 s{sT}, s{sJ}, {4*KVH}")
    srd(a, sDst, 4, WS_KV, 4 * KVH, sT)
    srd(a, sAux, 28, 0, 256)
    for r in range(4): a(f"v_mov_b32 v{vF+r}, 0")
    for n in range(6):
        if n == 4: a(f"v_add_u32 v{vL16}, 4096, v{vL16}")
        a(f"buffer_store_dwordx4 {vr(vF,4)}, v{vL16}, s[{sDst}:{sDst+3}], 0 offen offset:{(n%4)*1024} sc0 sc1")
    a(f"s_lshl_b32 s{sT}, s{sJ}, 2\nv_mov_b32 v{vT}, s{sT}\nv_mov_b32 v{vT2}, 1")
    a("s_waitcnt vmcnt(0)")
    a(f"buffer_store_dword v{vT2}, v{vT}, s[{sAux}:{sAux+3}], 0 offen sc0 sc1")
    a("s_endpgm")
    a.reset()

def gen_k1(name, opts):
    st_flags = opts.get("sw_flags", ""); ts = opts.get("ts"); pqf = opts.get("pq_flags", "")
    a = Prog()
    T = Stamps(a, ts, 0, 82 - 18, 4, 8)
    T.sb = 94 - 12
    tsk = int(ts) if ts else 0
    a("s_cmp_ge_u32 s2, 256\ns_cbranch_scc1 L_k1_end")
    T.stamp(0)
    a("s_cmp_ge_u32 s2, 64\ns_cbranch_scc1 L_k1_gemm")
    gen_sw(a, st_flags, T, opts.get("swld_flags", ""))
    T.ws = 6
    a("L_k1_gemm:")
    V = Regs("v", 1, 256)
    vLane = V.alloc(); vT = V.alloc(); vT2 = V.alloc(); vXo = V.alloc(); vRdM = V.alloc(); vRdR = V.alloc(); vL16 = V.alloc()
    vW = V.alloc(3); vG = V.alloc(); vM = V.alloc()
    vS = V.alloc(8, 4)
    vX = V.alloc(72, 4); vFr = V.alloc(64, 4); vAcc = V.alloc(36, 4); vTmp = V.alloc(16, 4)
    sX, sW, sO, sDbg = 8, 12, 16, 20
    sWave, sJ, sI, sT, sT2, sRole, sRot, ONES = 32, 33, 34, 35, 36, 37, 38, 39
    sXo, sWo = 40, 50
    sLd = 60
    a(f"s_load_dwordx4 s[24:27], s[0:1], {KA_X}")
    a(f"s_load_dwordx4 s[4:7], s[0:1], {KA_DBG}")
    a(f"v_lshrrev_b32 v{vT}, 6, v0\nv_readfirstlane_b32 s{sWave}, v{vT}")
    a(f"s_cmp_ge_u32 s2, 192\ns_cselect_b32 s{sRole}, 1, 0\ns_cselect_b32 s{sT}, 128, 0")
    a(f"s_sub_u32 s{sT}, s2, s{sT}\ns_sub_u32 s{sT}, s{sT}, 64\ns_lshr_b32 s{sT}, s{sT}, 3")
    a(f"s_lshr_b32 s{sJ}, s{sT}, 1\ns_and_b32 s{sT}, s{sT}, 1\ns_and_b32 s{sI}, s2, 7\ns_lshl_b32 s{sI}, s{sI}, 1\ns_add_u32 s{sI}, s{sI}, s{sT}")
    a(f"s_lshl_b32 s{sT}, s{sJ}, s{sRole}\ns_add_u32 s{sRot}, s{sI}, s{sT}")
    a(f"s_mul_i32 s{sT}, s{sRot}, 57\ns_lshr_b32 s{sT}, s{sT}, 9\ns_mul_i32 s{sT}, s{sT}, 9\ns_sub_u32 s{sRot}, s{sRot}, s{sT}")
    for c in range(9):
        a(f"s_lshl_b32 s{sXo+c}, s{sRot}, 7\ns_mul_i32 s{sWo+c}, s{sRot}, {64*3456}")
        if c < 8: a(f"s_add_u32 s{sRot}, s{sRot}, 1\ns_cmp_eq_u32 s{sRot}, 9\ns_cselect_b32 s{sRot}, 0, s{sRot}")
    a(f"v_and_b32 v{vLane}, 63, v0\nv_and_b32 v{vM}, 15, v0\nv_bfe_u32 v{vG}, v0, 4, 2\nv_lshlrev_b32 v{vL16}, 4, v{vLane}")
    a(f"s_lshl_b32 s{sT}, s{sI}, 7\ns_lshl_b32 s{sT2}, s{sWave}, 4\ns_add_u32 s{sT}, s{sT}, s{sT2}")
    a(f"v_add_u32 v{vXo}, s{sT}, v{vM}\nv_mul_u32_u24 v{vXo}, 1152, v{vXo}\nv_lshl_add_u32 v{vXo}, v{vG}, 4, v{vXo}")
    vXd, vXr = vS + 4, vS + 5
    a(f"v_lshrrev_b32 v{vT}, 2, v{vLane}\nv_add_u32 v{vXd}, s{sT}, v{vT}\nv_mul_u32_u24 v{vXd}, 1152, v{vXd}")
    a(f"v_lshrrev_b32 v{vT}, 5, v{vLane}\nv_lshlrev_b32 v{vT}, 1, v{vT}\nv_and_b32 v{vT2}, 3, v{vLane}\nv_xor_b32 v{vT}, v{vT}, v{vT2}\nv_lshl_add_u32 v{vXd}, v{vT}, 4, v{vXd}")
    a(f"s_mul_i32 s63, s{sWave}, {17*1024}\ns_add_u32 s63, s63, {CH}")
    a(f"v_lshrrev_b32 v{vT}, 3, v{vM}\nv_lshlrev_b32 v{vT}, 1, v{vT}\nv_xor_b32 v{vT}, v{vT}, v{vG}\nv_lshlrev_b32 v{vT}, 4, v{vT}\nv_lshl_add_u32 v{vXr}, v{vM}, 6, v{vT}\nv_add_u32 v{vXr}, s63, v{vXr}")
    a("s_waitcnt lgkmcnt(0)")
    srd(a, sX, 24, 0, S * D * 2)
    srd(a, sW, 26, 0, D * 3 * D * 2)
    for n in range(17):
        a(f"s_add_u32 m0, s63, {n*1024 - 64*(n&1)}")
        a(f"buffer_load_dwordx4 v{vXd}, s[{sX}:{sX+3}], s{sXo+n//2} offen offset:{64*(n&1)} lds", tag=f"x{n}")
    a(f"buffer_load_dwordx4 {vr(vX+4*17,4)}, v{vXo}, s[{sX}:{sX+3}], s{sXo+8} offen offset:64")
    a(f"s_mul_i32 s{sT}, s{sJ}, 144\ns_add_u32 s61, s{sT}, 1152\ns_lshl_b32 s{sT}, s{sT}, 1")
    a(f"s_cmp_eq_u32 s{sRole}, 1\ns_cselect_b32 s61, s{sT}, s61\ns_cselect_b32 s62, 0, {1152-144}")
    a(f"s_mul_i32 s{sLd}, s{sWave}, 3072\ns_mul_i32 s{sT}, s{sWave}, 192")
    for n in range(3):
        a(f"v_add_u32 v{vT}, s{sT}, v{vLane}")
        if n: a(f"v_add_u32 v{vT}, {64*n}, v{vT}")
        a(f"v_mul_u32_u24 v{vT2}, 3641, v{vT}\nv_lshrrev_b32 v{vT2}, 16, v{vT2}")
        a(f"v_mul_u32_u24 v{vTmp}, 18, v{vT2}\nv_sub_u32 v{vT}, v{vT}, v{vTmp}")
        a(f"v_and_b32 v{vTmp}, 0x33, v{vT2}\nv_bfe_u32 v{vTmp+1}, v{vT2}, 2, 1\nv_lshl_or_b32 v{vTmp}, v{vTmp+1}, 3, v{vTmp}\nv_bfe_u32 v{vTmp+1}, v{vT2}, 3, 1\nv_lshl_or_b32 v{vTmp}, v{vTmp+1}, 2, v{vTmp}")
        a(f"v_mul_u32_u24 v{vTmp}, 3456, v{vTmp}\nv_lshl_add_u32 v{vTmp}, v{vT}, 4, v{vTmp}\nv_add_u32 v{vTmp}, s61, v{vTmp}")
        a(f"v_cmp_lt_u32 vcc, 8, v{vT}\nv_add_u32 v{vTmp+1}, s62, v{vTmp}\nv_cndmask_b32 v{vW+n}, v{vTmp}, v{vTmp+1}, vcc")
    def wdma(c):
        for n in range(3):
            a(f"s_add_u32 m0, s{sLd}, {(c % 8)*CH + n*1024}")
            a(f"buffer_load_dwordx4 v{vW+n}, s[{sW}:{sW+3}], s{sWo+c} offen lds", tag=f"w{c}")
    lab = [0]
    def cdma(c):
        lab[0] += 1
        a(f"s_cmp_ge_u32 s{sWave}, 6\ns_cbranch_scc1 L_k1_sk{lab[0]}")
        a.cond_begin(); wdma(c); a.cond_end()
        a.raw(f"L_k1_sk{lab[0]}:")
    PRE = 1; AH = opts.get("k1ah", 4)
    a(f"s_cmp_ge_u32 s{sWave}, 6\ns_cbranch_scc1 L_k1_nodma")
    a.cond_begin()
    for c in range(PRE): wdma(c)
    a("s_branch L_k1_dmaj")
    a.cond_end()
    a.raw("L_k1_nodma:\ns_waitcnt vmcnt(0)\nL_k1_dmaj:")
    a(f"v_bfe_u32 v{vT}, v{vLane}, 2, 2\nv_lshrrev_b32 v{vT2}, 1, v{vG}\nv_lshl_add_u32 v{vT}, v{vT2}, 4, v{vT}\nv_and_b32 v{vT2}, 1, v{vG}\nv_lshl_add_u32 v{vT}, v{vT2}, 2, v{vT}")
    a(f"v_mul_u32_u24 v{vT}, 288, v{vT}\nv_and_b32 v{vT2}, 3, v{vLane}\nv_lshl_add_u32 v{vRdM}, v{vT2}, 3, v{vT}")
    a(f"v_mul_u32_u24 v{vT2}, 72, v{vT2}\nv_add3_u32 v{vRdR}, v{vT}, v{vT2}, 32")
    if tsk == 6: T.stamp(1)
    if tsk == 7:
        a(f"v_mov_b32 v{vS}, v{vX+71}"); T.stamp(1)
    a(f"s_mov_b32 s{ONES}, 0x3f803f80")
    for k in range(4): a(f"v_mov_b32 v{vS+k}, 0")
    def dots(n):
        for r in range(4 * n, 4 * n + 4):
            a(f"v_dot2_f32_bf16 v{vS+(r&1)}, v{vX+r}, s{ONES}, v{vS+(r&1)}")
            a(f"v_dot2_f32_bf16 v{vS+2+(r&1)}, v{vX+r}, v{vX+r}, v{vS+2+(r&1)}")
    for n in range(17):
        a.wait_vm(f"x{n}")
        a(f"ds_read_b128 {vr(vX+4*n,4)}, v{vXr} offset:{n*1024}")
        if n >= 2: dots(n - 2)
    a("s_waitcnt lgkmcnt(0)\ns_barrier")
    cdma(1)
    for n in (15, 16, 17): dots(n)
    a(f"v_add_f32 v{vS}, v{vS}, v{vS+1}\nv_add_f32 v{vS+2}, v{vS+2}, v{vS+3}")
    xg_reduce_n(a, [vS, vS + 2], [vS + 1, vS + 3])
    a(f"s_mov_b32 s{sT}, {fhex(1.0/576)}\ns_mov_b32 s{sT2}, {fhex(1e-5)}")
    a(f"v_mul_f32 v{vS}, s{sT}, v{vS}\nv_mul_f32 v{vS+2}, s{sT}, v{vS+2}")
    a(f"v_fma_f32 v{vS+2}, -v{vS}, v{vS}, v{vS+2}\nv_max_f32 v{vS+2}, 0, v{vS+2}\nv_add_f32 v{vS+2}, s{sT2}, v{vS+2}")
    a(f"v_rsq_f32 v{vS+4}, v{vS+2}\nv_mul_f32 v{vS+6}, -v{vS}, v{vS+4}")
    extra = list(range(2, AH))
    for r0 in range(0, 72, 4):
        if extra and r0 in (12, 40, 64): cdma(extra.pop(0))
        for r in range(r0, r0 + 4):
            t = vTmp + 2 * (r & 3)
            a(f"v_lshlrev_b32 v{t}, 16, v{vX+r}\nv_and_b32 v{t+1}, 0xffff0000, v{vX+r}")
        for r in range(r0, r0 + 4):
            t = vTmp + 2 * (r & 3)
            a(f"v_pk_fma_f32 {vr(t,2)}, {vr(t,2)}, {vr(vS+4,2)}, {vr(vS+6,2)} op_sel_hi:[1,0,0]")
        for r in range(r0, r0 + 4):
            t = vTmp + 2 * (r & 3)
            a(f"v_cvt_pk_bf16_f32 v{vX+r}, v{t}, v{t+1}")
    for c in extra: cdma(c)
    def ST(k):
        if tsk == k:
            a.raw("s_waitcnt lgkmcnt(0)"); T.stamp(1); a.raw("s_waitcnt lgkmcnt(0)")
    ST(1)
    a(f"s_cmp_eq_u32 s{sRole}, 1\ns_cbranch_scc1 L_k1_q")
    cols = [0, 40, 72, 112, 144, 184, 216, 256]
    def reads(n):
        ksg, tile = divmod(n, 9)
        ks = ksg & 1; f = vFr + 4 * (n % 8)
        ad, col = (vRdM, cols[tile]) if tile < 8 else (vRdR, 0)
        return [f"ds_read_b64_tr_b16 {vr(f+2*hf,2)}, v{ad} offset:{ks*9216 + hf*2304 + col}" for hf in range(2)]
    def phi(a, src, t, eps):
        a(f"v_mul_f32 v{t}, s{sT}, v{src}\nv_exp_f32 v{t}, v{t} clamp\nv_max_f32 v{src}, 0, v{src}\nv_add_f32 v{src}, s{eps}, v{src}\nv_add_f32 v{src}, v{src}, v{t}")
    snapshot = None
    for role in (0, 1):
        if role == 1:
            a("L_k1_q:")
            a.replay_vm = True
            for c in range(AH):
                for n in range(3): a.phantom_vm(f"w{c}")
        def newchunk(c):
            a.wait_vm(f"w{c}")
            a("s_barrier")
            if c in (0, 4, 8): ST(2 + c // 4)
            if c:
                d = CH if c < 8 else -7 * CH
                a(f"v_add_u32 v{vRdM}, {hex(d & 0xffffffff)}, v{vRdM}\nv_add_u32 v{vRdR}, {hex(d & 0xffffffff)}, v{vRdR}")
            if c + AH < 9:
                assert c + AH < 8 or c >= 2
                cdma(c + AH)
        LA = 7
        def issue(n):
            if n >= 162: return
            if n % 18 == 0: newchunk(n // 18)
            for y in reads(n): a(y)
        for n in range(LA): issue(n)
        for n in range(162):
            ksg, t = divmod(n, 9)
            f = vr(vFr + 4 * (n % 8), 4); x = vr(vX + 4 * ksg, 4); ac = vr(vAcc + 4 * t, 4)
            A_, B_ = (x, f) if role == 0 else (f, x)
            a(f"v_mfma_f32_16x16x32_bf16 {ac}, {A_}, {B_}, {ac if ksg else 0}")
            issue(n + LA)
        ST(5)
        a(f"s_mov_b32 s{sT}, {fhex(1.4426950408889634)}\ns_mov_b32 s{sT2}, {fhex(1e-6)}")
        if role == 1:
            a(f"s_lshl_b32 s61, s{sI}, 3\ns_add_u32 s61, s61, s{sWave}\ns_lshl_b32 s61, s61, 2\ns_add_u32 s61, s61, s{sJ}\ns_mul_i32 s61, s61, 4608")
            srd(a, sO, 6, WS_PQ, 4608, 61)
            pos = {0: 0, 8: 2, 1: 4, 2: 6, 3: 8, 4: 10, 5: 12, 6: 14, 7: 16}
            PK = vFr
            for t in (0, 8, 1, 2, 3, 4, 5, 6, 7):
                for r in range(4): a(f"v_mul_f32 v{vTmp+r}, s{sT}, v{vAcc+4*t+r}")
                for r in range(4): a(f"v_exp_f32 v{vTmp+r}, v{vTmp+r} clamp")
                for r in range(4): a(f"v_max_f32 v{vAcc+4*t+r}, 0, v{vAcc+4*t+r}")
                for r in range(4): a(f"v_add_f32 v{vAcc+4*t+r}, s{sT2}, v{vAcc+4*t+r}")
                for r in range(4): a(f"v_add_f32 v{vAcc+4*t+r}, v{vAcc+4*t+r}, v{vTmp+r}")
                a(f"v_cvt_pk_bf16_f32 v{PK+pos[t]}, v{vAcc+4*t}, v{vAcc+4*t+1}\nv_cvt_pk_bf16_f32 v{PK+pos[t]+1}, v{vAcc+4*t+2}, v{vAcc+4*t+3}")
                if pos[t] % 4 == 2:
                    a(f"buffer_store_dwordx4 {vr(PK+pos[t]-2,4)}, v{vL16}, s[{sO}:{sO+3}], 0 offen offset:{(pos[t]//4)*1024}{pqf}")
            a(f"v_lshlrev_b32 v{vT}, 3, v{vLane}\ns_mov_b32 s61, 4096")
            a(f"buffer_store_dwordx2 {vr(PK+16,2)}, v{vT}, s[{sO}:{sO+3}], s61 offen{pqf}")
            T.flush(2, vT, vT2)
            a("s_endpgm")
            continue
        srd(a, sDbg, 4, 0, 256)
        a(f"s_lshl_b32 s61, s{sJ}, 2\nv_mov_b32 v{vW}, s61")
        a(f"buffer_load_dword v{vW+1}, v{vW}, s[{sDbg}:{sDbg+3}], 0 offen sc0 sc1")
        a(f"s_lshr_b32 s61, s{sWave}, 1\ns_lshl_b32 s61, s61, 10\ns_and_b32 s62, s{sWave}, 1\ns_lshl_b32 s62, s62, 3\ns_add_u32 s61, s61, s62\ns_add_u32 s61, s61, {XB}")
        a(f"v_add_u32 v{vXo}, s61, v{vL16}")
        a(f"v_cmp_gt_u32 s[64:65], 8, v{vM}")
        for t in (4, 5, 6, 7, 0, 1, 2, 3, 8):
            ac = vAcc + 4 * t
            if t < 4 or t == 8:
                d = ac if t < 4 else vTmp + 4
                for r in range(4): a(f"v_mul_f32 v{vTmp+r}, s{sT}, v{ac+r}")
                for r in range(4): a(f"v_exp_f32 v{vTmp+r}, v{vTmp+r} clamp")
                for r in range(4): a(f"v_max_f32 v{d+r}, 0, v{ac+r}")
                for r in range(4): a(f"v_add_f32 v{d+r}, s{sT2}, v{d+r}")
                for r in range(4): a(f"v_add_f32 v{d+r}, v{d+r}, v{vTmp+r}")
                if t == 8:
                    for r in range(4): a(f"v_cndmask_b32 v{ac+r}, v{ac+r}, v{d+r}, s[64:65]")
            a(f"v_cvt_pk_bf16_f32 v{ac}, v{ac}, v{ac+1}\nv_cvt_pk_bf16_f32 v{ac+1}, v{ac+2}, v{ac+3}")
            a(f"ds_write_b64 v{vXo}, {vr(ac,2)} offset:{t*4096}")
        sHH, sCl = 61, 62
        a(f"s_and_b32 s{sHH}, s{sWave}, 3\ns_lshr_b32 s{sCl}, s{sWave}, 2")
        a(f"s_lshl_b32 s66, s{sHH}, 12\ns_add_u32 s66, s66, {XB}")
        a(f"s_cmp_eq_u32 s{sCl}, 0\ns_cselect_b32 s67, s66, {XB+8*4096}\ns_cselect_b32 s68, {XB+8*4096}, s66\ns_cselect_b64 s[70:71], -1, 0")
        a(f"v_add_u32 v{vRdM}, s66, v{vL16}\nv_add_u32 v{vRdR}, s67, v{vL16}\nv_add_u32 v{vT}, s68, v{vL16}")
        a(f"s_lshl_b32 s66, s{sJ}, 2\ns_add_u32 s66, s66, s{sHH}\ns_mul_i32 s66, s66, {KVH}")
        srd(a, sO, 6, WS_KV, KVH, 66)
        vA1, vA2, vA3 = vS, vS + 1, vS + 2
        a(f"v_lshrrev_b32 v{vTmp}, 1, v{vM}\nv_cmp_eq_u32 s[72:73], s{sHH}, v{vTmp}\nv_and_b32 v{vTmp+1}, 1, v{vM}\nv_lshlrev_b32 v{vTmp+1}, 2, v{vTmp+1}")
        a(f"v_mov_b32 v{vTmp+7}, {OOB}")
        a(f"v_cndmask_b32 v{vTmp+1}, v{vTmp+7}, v{vTmp+1}, s[72:73]")
        a(f"v_lshlrev_b32 v{vTmp+2}, 2, v{vM}")
        a(f"v_and_b32 v{vTmp+3}, 2, v{vG}\nv_lshlrev_b32 v{vTmp+3}, 4, v{vTmp+3}\nv_xor_b32 v{vTmp+3}, v{vTmp+3}, v{vTmp+2}")
        a(f"v_lshl_add_u32 v{vTmp+3}, v{vG}, 8, v{vTmp+3}\nv_lshl_add_u32 v{vTmp+4}, v{vG}, 5, v{vTmp+1}\nv_add_u32 v{vTmp+4}, {KV_RM}, v{vTmp+4}")
        a(f"v_cndmask_b32 v{vA1}, v{vTmp+4}, v{vTmp+3}, s[70:71]")
        a(f"s_cmp_eq_u32 s{sCl}, 0\ns_cselect_b32 s74, 64, 8\ns_cselect_b32 s77, 8, 64\ns_cselect_b32 s78, {KV_AR-KV_AM}, 0\ns_add_u32 s78, s78, {KV_AM}\ns_lshl_b32 s75, s74, 1\ns_add_u32 s76, s75, s74")
        a(f"v_cndmask_b32 v{vTmp+3}, v{vTmp+2}, v{vTmp+1}, s[70:71]\nv_add_u32 v{vTmp+3}, s78, v{vTmp+3}")
        a(f"s_lshr_b32 s79, s{sHH}, 1\ns_add_u32 s79, s79, 2\nv_cmp_eq_u32 s[72:73], s79, v{vG}\nv_cmp_eq_u32 vcc, 0, v{vG}")
        a(f"v_add_u32 v{vTmp+4}, s77, v{vTmp+3}\nv_add_u32 v{vTmp+5}, s77, v{vTmp+4}")
        a(f"v_cndmask_b32 v{vA2}, v{vTmp+7}, v{vTmp+3}, vcc\nv_cndmask_b32 v{vA2}, v{vA2}, v{vTmp+4}, s[72:73]\nv_cndmask_b32 v{vA3}, v{vTmp+7}, v{vTmp+5}, s[72:73]")
        a(f"s_and_b32 s79, s{sHH}, 1\ns_cmp_eq_u32 s79, 1\ns_cselect_b64 s[80:81], -1, 0")
        a(f"v_mov_b32 v{vS+3}, s{ONES}")
        a("s_waitcnt lgkmcnt(0)\ns_barrier")
        fV, fB1, fB2, fR = vFr, vFr + 16, vFr + 32, vFr + 48
        for k in range(4):
            a(f"ds_read_b128 {vr(fR+4*k,4)}, v{vL16} offset:{XB+8*4096+k*1024}")
        for k in range(4):
            a(f"ds_read_b128 {vr(fV+4*k,4)}, v{vRdM} offset:{4*4096+k*1024}")
            a(f"ds_read_b128 {vr(fB1+4*k,4)}, v{vRdR} offset:{k*1024}")
            a(f"ds_read_b128 {vr(fB2+4*k,4)}, v{vT} offset:{k*1024}")
        for r in range(16): a(f"v_cndmask_b32 v{fR+r}, v{fR+r}, v{vS+3}, s[64:65]")
        D1, D2 = vAcc, vAcc + 4
        for k in range(4):
            a(f"v_mfma_f32_16x16x32_bf16 {vr(D1,4)}, {vr(fV+4*k,4)}, {vr(fB1+4*k,4)}, {vr(D1,4) if k else 0}")
            a(f"v_mfma_f32_16x16x32_bf16 {vr(D2,4)}, {vr(fR+4*k,4)}, {vr(fB2+4*k,4)}, {vr(D2,4) if k else 0}")
        a("s_waitcnt vmcnt(0)")
        a.raw("L_k1_poll:")
        a(f"v_readfirstlane_b32 s79, v{vW+1}\ns_cmp_lg_u32 s79, 0\ns_cbranch_scc1 L_k1_go")
        a(f"s_sleep 2\nbuffer_load_dword v{vW+1}, v{vW}, s[{sDbg}:{sDbg+3}], 0 offen sc0 sc1\ns_waitcnt vmcnt(0)\ns_branch L_k1_poll")
        a.raw("L_k1_go:")
        a("s_nop 7")
        a(f"v_cndmask_b32 v{D2}, v{D2}, v{D2+2}, s[80:81]\nv_cndmask_b32 v{D2+1}, v{D2+1}, v{D2+3}, s[80:81]")
        for r in range(4):
            a(f"buffer_atomic_add_f32 v{D1+r}, v{vA1}, s[{sO}:{sO+3}], {'0' if r == 0 else 's'+str(73+r)} offen")
        a(f"buffer_atomic_add_f32 v{D2}, v{vA2}, s[{sO}:{sO+3}], 0 offen")
        a(f"buffer_atomic_add_f32 v{D2+1}, v{vA3}, s[{sO}:{sO+3}], 0 offen")
        T.flush(2, vT, vT2)
        a("s_endpgm")
        a.reset()
    a("L_k1_end:\ns_endpgm")
    return header(name) + a.text(), descriptor(name, 256, 256, 96)
```

```python
from common import *
RB = 0
KB = 4 * 3 * 5 * 1024
K3_LDS = KB + 4 * 8 * KVH
KV_Z = 1376
def gen_k3(name, opts):
    ts = opts.get("ts"); hf = opts.get("h_flags", "")
    a = Prog()
    T = Stamps(a, ts, 1, 64, 4, 4)
    V = Regs("v", 1, 256)
    vLane = V.alloc(); vM = V.alloc(); vG = V.alloc(); vL16 = V.alloc(); vT = V.alloc(); vT2 = V.alloc()
    vMM = V.alloc(); vRM = V.alloc(); vAM = V.alloc(4); vAR = V.alloc(4); vXo = V.alloc(); vX2 = V.alloc(); vL8 = V.alloc()
    vH0 = V.alloc(); vH1 = V.alloc(); vH2 = V.alloc(); vPF = V.alloc(2)
    vEps = V.alloc(4, 4)
    vRaw = V.alloc(24, 4)
    vKA = V.alloc(64, 4)
    vS1 = V.alloc(24, 4)
    vO = V.alloc(60, 4)
    vRr = V.alloc(4, 2)
    vXr = V.alloc(10, 4)
    vTmp = V.alloc(8, 4)
    vAc2 = V.alloc(20, 4)
    def PQ(mt, r, n): return vr(24 * mt + r, n, "a")
    def WO(v, t): return vr(96 + 4 * (5 * v + t), 4, "a")
    def AC(mt, t):
        return (vr(196 + 20 * mt + 4 * t, 4, "a") if mt < 3 else vr(vAc2 + 4 * t, 4))
    sKV, sPQ, sWO, sX, sH, sST, sWS = 8, 12, 16, 20, 24, 28, 56
    sWave, sJ, sI, sT, sT2, sU = 32, 33, 34, 35, 36, 37
    sG = 40
    a("s_cmp_ge_u32 s2, 256\ns_cbranch_scc1 L_k3_end")
    T.stamp(0)
    a(f"s_load_dwordx2 s[4:5], s[0:1], {KA_WS}")
    a(f"s_load_dwordx2 s[6:7], s[0:1], {KA_X}")
    a(f"v_lshrrev_b32 v{vT}, 6, v0\nv_readfirstlane_b32 s{sWave}, v{vT}")
    a(f"s_lshr_b32 s{sJ}, s2, 5\ns_and_b32 s{sI}, s2, 7\ns_lshl_b32 s{sI}, s{sI}, 2\ns_bfe_u32 s{sT}, s2, 0x20003\ns_add_u32 s{sI}, s{sI}, s{sT}")
    a(f"v_and_b32 v{vLane}, 63, v0\nv_and_b32 v{vM}, 15, v0\nv_bfe_u32 v{vG}, v0, 4, 2\nv_lshlrev_b32 v{vL16}, 4, v{vLane}\nv_lshlrev_b32 v{vL8}, 3, v{vLane}")
    a(f"s_mul_i32 s{sU}, s{sWave}, {8*KVH}")
    a(f"s_lshl_b32 s{sT2}, s{sI}, 4\ns_add_u32 s{sT2}, s{sT2}, s{sWave}\ns_mul_i32 s{sT2}, s{sT2}, 4608")
    a("s_waitcnt lgkmcnt(0)")
    srd(a, sKV, 4, WS_KV, 8 * KVH, sU)
    srd(a, sPQ, 4, WS_PQ, 13 * 4608, sT2)
    a(f"s_add_u32 s{sU}, s{sU}, {KB}")
    for n in range(11):
        if n % 4 == 0: a(f"s_add_u32 m0, s{sU}, {n*1024}\ns_mov_b32 s{sT}, {n*1024}")
        a(f"buffer_load_dwordx4 v{vL16}, s[{sKV}:{sKV+3}], s{sT} offen offset:{(n%4)*1024} lds", tag=f"kv{n}")
    def pqload(mt):
        L = [f"s_mov_b32 s{sT}, {mt*4*4608}"]
        for pl, r in enumerate((0, 4, 10, 16)):
            L.append(f"buffer_load_dwordx4 {PQ(mt,r,4)}, v{vL16}, s[{sPQ}:{sPQ+3}], s{sT} offen offset:{pl*1024}")
        L.append(f"s_mov_b32 s{sT}, {mt*4*4608+4096}")
        L.append(f"buffer_load_dwordx2 {PQ(mt,22,2)}, v{vL8}, s[{sPQ}:{sPQ+3}], s{sT} offen")
        return L
    for x in pqload(0): a(x)
    a(f"s_lshl_b32 s{sT}, s{sJ}, 2\ns_add_u32 s{sT}, s{sT}, s{sWave}\ns_mul_i32 s{sT}, s{sT}, {25*1024}"); srd(a, sWO, 4, WS_WO, 25 * 1024, sT)
    srd(a, sX, 6, 0, S * D * 2)
    srd(a, sST, 4, WS_ST, SZ_ST)
    a(f"s_lshl_b32 s{sT}, s{sI}, 2\ns_add_u32 s{sT}, s{sT}, s{sWave}\ns_mul_i32 s{sT}, s{sT}, 18432"); srd(a, sH, 4, WS_H, 18432, sT)
    a(f"s_and_b32 s{sT}, s2, 7\ns_mul_i32 s{sT}, s{sT}, {SZ_W//8}"); srd(a, sWS, 4, WS_W, SZ_W // 8, sT)
    a(f"v_lshrrev_b32 v{vT}, 3, v{vM}\nv_lshlrev_b32 v{vT}, 1, v{vT}\nv_xor_b32 v{vT}, v{vT}, v{vG}\nv_lshlrev_b32 v{vT}, 4, v{vT}\nv_lshl_add_u32 v{vMM}, v{vM}, 6, v{vT}\nv_add_u32 v{vMM}, s{sU}, v{vMM}")
    a(f"v_lshlrev_b32 v{vRM}, 3, v{vM}\nv_add_u32 v{vRM}, s{sU}, v{vRM}")
    a(f"s_add_u32 s{sT}, s{sU}, {KV_Z}\nv_mov_b32 v{vTmp}, s{sT}\nv_and_b32 v{vT}, 3, v{vM}\nv_lshrrev_b32 v{vT2}, 2, v{vM}")
    a(f"s_add_u32 s{sT}, s{sU}, {KV_AM}\nv_lshlrev_b32 v{vTmp+1}, 6, v{vT}\nv_lshl_add_u32 v{vTmp+1}, v{vG}, 4, v{vTmp+1}\nv_add_u32 v{vTmp+1}, s{sT}, v{vTmp+1}")
    a(f"s_add_u32 s{sT}, s{sU}, {KV_AR}\nv_lshlrev_b32 v{vTmp+2}, 3, v{vT}\nv_add_u32 v{vTmp+2}, s{sT}, v{vTmp+2}")
    a(f"v_cmp_eq_u32 s[48:49], 0, v{vT}\nv_cmp_ne_u32 s[50:51], 3, v{vT}")
    for q in range(4):
        a(f"v_cmp_eq_u32 vcc, {q}, v{vT2}\nv_cmp_eq_u32 s[{sG+2*q}:{sG+2*q+1}], {q}, v{vG}")
        a("s_and_b64 vcc, vcc, s[50:51]\ns_or_b64 vcc, vcc, s[48:49]")
        a(f"v_cndmask_b32 v{vAM+q}, v{vTmp}, v{vTmp+1}, vcc\nv_cndmask_b32 v{vAR+q}, v{vTmp}, v{vTmp+2}, vcc")
    for x in pqload(1): a(x)
    a(f"v_mov_b32 v{vTmp}, {OOB}")
    a(f"s_lshl_b32 s{sT}, s{sI}, 6\ns_lshl_b32 s{sT2}, s{sWave}, 4\ns_add_u32 s{sT}, s{sT}, s{sT2}\nv_add_u32 v{vT}, s{sT}, v{vM}")
    a(f"v_mul_u32_u24 v{vXo}, 1152, v{vT}\ns_mul_i32 s{sT2}, s{sJ}, 144\nv_add_u32 v{vXo}, s{sT2}, v{vXo}")
    a(f"v_lshl_add_u32 v{vX2}, v{vG}, 3, v{vXo}\nv_add_u32 v{vX2}, 128, v{vX2}\nv_lshl_add_u32 v{vXo}, v{vG}, 4, v{vXo}")
    a(f"v_cmp_gt_u32 s[52:53], 2, v{vG}\nv_cndmask_b32 v{vX2}, v{vTmp}, v{vX2}, s[52:53]")
    a(f"v_lshlrev_b32 v{vTmp+3}, 6, v{vT}\ns_lshl_b32 s{sT2}, s{sJ}, 3\nv_add_u32 v{vTmp+3}, s{sT2}, v{vTmp+3}\nv_cndmask_b32 v{vT2}, v{vTmp}, v{vTmp+3}, s[{sG}:{sG+1}]")
    a(f"s_mul_i32 s{sT}, s{sJ}, {9*256}\nv_lshlrev_b32 v{vH0}, 8, v{vG}\nv_lshl_add_u32 v{vH0}, v{vM}, 4, v{vH0}\nv_add_u32 v{vH0}, s{sT}, v{vH0}")
    a(f"v_lshlrev_b32 v{vH2}, 4, v{vM}\nv_lshl_add_u32 v{vH2}, v{vG}, 3, v{vH2}\ns_add_u32 s{sT}, s{sT}, 2048\nv_add_u32 v{vH2}, s{sT}, v{vH2}\nv_cndmask_b32 v{vH2}, v{vTmp}, v{vH2}, s[52:53]")
    a(f"s_lshr_b32 s{sT}, s2, 3\ns_lshl_b32 s{sT}, s{sT}, 2\ns_add_u32 s{sT}, s{sT}, s{sWave}\ns_mul_i32 s{sT}, s{sT}, {81*128}")
    a(f"v_lshlrev_b32 v{vPF}, 7, v{vLane}\nv_add_u32 v{vPF}, s{sT}, v{vPF}\nv_add_u32 v{vPF+1}, 8192, v{vPF}\nv_cmp_gt_u32 vcc, 17, v{vLane}\nv_cndmask_b32 v{vPF+1}, v{vTmp}, v{vPF+1}, vcc")
    a(f"v_mov_b32 v{vEps}, {fhex(1e-6)}\nv_mov_b32 v{vEps+1}, 0\nv_mov_b32 v{vEps+2}, 0\nv_mov_b32 v{vEps+3}, 0")
    for k in range(3): a(f"v_mov_b32 v{vO+20*k+18}, 0\nv_mov_b32 v{vO+20*k+19}, 0")
    for x in pqload(2): a(x)
    def kvread(h):
        r = vRaw + 12 * (h & 1)
        a.wait_vm(f"kv{((h+1)*KVH-1)//1024}")
        a(f"ds_read_b128 {vr(r,4)}, v{vMM} offset:{h*KVH}")
        a(f"ds_read_b128 {vr(r+4,4)}, v{vAM+h%4} offset:{h*KVH}")
        a(f"ds_read_b64 {vr(r+8,2)}, v{vRM} offset:{h*KVH+KV_RM}")
        a(f"ds_read_b64 {vr(r+10,2)}, v{vAR+h%4} offset:{h*KVH}")
    def kvbuild(h):
        r = vRaw + 12 * (h & 1); odd = h & 1; p8 = h >> 1
        for k in range(2):
            f = vKA + 8 * h + 4 * k
            mo, ro = (0, 2) if not odd else (2, 0)
            a(f"v_cvt_pk_bf16_f32 v{f+mo}, v{r+4*k}, v{r+4*k+1}\nv_cvt_pk_bf16_f32 v{f+mo+1}, v{r+4*k+2}, v{r+4*k+3}")
            a(f"v_cvt_pk_bf16_f32 v{vT}, v{r+8+2*k}, v{r+9+2*k}\nv_mov_b32 v{f+ro+1-odd}, 0")
            a(f"v_cndmask_b32 v{f+ro+odd}, 0, v{vT}, s[{sG+2*p8}:{sG+2*p8+1}]")
    kvread(0); kvread(1)
    for h in range(8):
        kvbuild(h)
        if h + 2 < 8: kvread(h + 2)
    T.stamp(1)
    wl = []
    for k in range(25):
        if k % 4 == 0: wl.append(f"s_mov_b32 s{sT}, {k*1024}")
        wl.append(f"buffer_load_dwordx4 {WO(k//5,k%5)}, v{vL16}, s[{sWO}:{sWO+3}], s{sT} offen offset:{(k%4)*1024}")
    pf = [f"buffer_load_dword v{vH1}, v{vPF}, s[{sWS}:{sWS+3}], 0 offen", f"buffer_load_dword v{vRM}, v{vPF+1}, s[{sWS}:{sWS+3}], 0 offen"] if not opts.get("nopf") else []
    xl = [f"buffer_load_dwordx4 {vr(vXr,4)}, v{vXo}, s[{sX}:{sX+3}], 0 offen",
          f"buffer_load_dwordx4 {vr(vXr+4,4)}, v{vXo}, s[{sX}:{sX+3}], 0 offen offset:64",
          f"buffer_load_dwordx2 {vr(vXr+8,2)}, v{vX2}, s[{sX}:{sX+3}], 0 offen"]
    boff = [0, 2, 6, 8, 12, 14, 18, 20]
    def s1_mfma(n):
        mt, h = divmod(n, 8)
        ac = vS1 + 8 * (n % 3)
        L = []
        if h == 0:
            for d in (8, 14, 20): L += [f"v_accvgpr_mov_b32 a{24*mt+d}, a{24*mt+2}", f"v_accvgpr_mov_b32 a{24*mt+d+1}, a{24*mt+3}"]
        return L + [f"v_mfma_f32_16x16x32_bf16 {vr(ac+4,4)}, {vr(vKA+8*h+4,4)}, {PQ(mt,boff[h],4)}, {vr(vEps,4)}",
                    f"v_mfma_f32_16x16x32_bf16 {vr(ac,4)}, {vr(vKA+8*h,4)}, {PQ(mt,boff[h],4)}, 0"]
    def s1_valu(n):
        mt, h = divmod(n, 8)
        ac = vS1 + 8 * (n % 3); o = vO + 20 * (mt % 3); rr = vRr + 2 * (h >> 2)
        L = [f"v_rcp_f32 v{ac+4}, v{ac+4}"]
        d = o + 4 * (h >> 1) + 2 * (h & 1)
        L += [None]
        for r in range(4): L.append(f"v_mul_f32 v{ac+r}, v{ac+r}, v{ac+4}")
        if h % 4 == 0: L += [f"v_mul_f32 v{rr}, v{ac+5}, v{ac+4}", f"v_mul_f32 v{rr+1}, v{ac+6}, v{ac+4}"]
        else: L += [f"v_fma_f32 v{rr}, v{ac+5}, v{ac+4}, v{rr}", f"v_fma_f32 v{rr+1}, v{ac+6}, v{ac+4}, v{rr+1}"]
        L += [f"v_cvt_pk_bf16_f32 v{d}, v{ac}, v{ac+1}", f"v_cvt_pk_bf16_f32 v{d+1}, v{ac+2}, v{ac+3}"]
        if h % 4 == 3: L.append(f"v_cvt_pk_bf16_f32 v{o+16+(h>>2)}, v{rr}, v{rr+1}")
        return L
    def s2_mfma(mt):
        o = vO + 20 * (mt % 3)
        return [f"v_mfma_f32_16x16x32_bf16 {AC(mt,t)}, {WO(v,t)}, {vr(o+4*v,4)}, {AC(mt,t) if v else 0}" for v in range(5) for t in range(5)]
    mem = wl + pqload(3) + pf + xl
    extras = {0: mem[:len(mem) // 2], 1: mem[len(mem) // 2:], 2: s2_mfma(0), 3: s2_mfma(1)}
    for x in s1_mfma(0) + s1_mfma(1): a(x)
    for n in range(32):
        mt, h = divmod(n, 8)
        nx = s1_mfma(n + 2) if n + 2 < 32 else []
        ex = extras[mt]; lo = (len(ex) * h) // 8; hi = (len(ex) * (h + 1)) // 8
        fill = nx + ex[lo:hi]
        va = s1_valu(n)
        a(va[0])
        if fill: a(fill[0])
        for x in interleave(va[2:], fill[1:], 0): a(x)
    T.stamp(2)
    for x in s2_mfma(2) + s2_mfma(3): a(x)
    T.stamp(3)
    own = vRaw
    for w in range(4):
        a(f"s_cmp_lg_u32 s{sWave}, {w}\ns_cbranch_scc1 L_k3_w{w}")
        a.cond_begin()
        for mt in range(4):
            for t in range(5):
                if mt == w:
                    if mt < 3:
                        for r in range(4): a(f"v_accvgpr_read_b32 v{own+4*t+r}, a{196+20*mt+4*t+r}")
                    else:
                        for r in range(4): a(f"v_mov_b32 v{own+4*t+r}, v{vAc2+4*t+r}")
                else:
                    slot = w - (1 if w > mt else 0)
                    a(f"ds_write_b128 v{vL16}, {AC(mt,t)} offset:{RB+((mt*3+slot)*5+t)*1024}")
        a.cond_end()
        a.raw(f"L_k3_w{w}:")
    a(f"s_mul_i32 s{sT}, s{sWave}, {15*1024}\nv_add_u32 v{vL8}, s{sT}, v{vL16}")
    for t in range(5):
        for k in range(2):
            xd = vXr + 2 * t + k
            a(f"v_lshlrev_b32 v{vTmp+4}, 16, v{xd}\nv_and_b32 v{vTmp+5}, 0xffff0000, v{xd}")
            a(f"v_add_f32 v{own+4*t+2*k}, v{own+4*t+2*k}, v{vTmp+4}\nv_add_f32 v{own+4*t+2*k+1}, v{own+4*t+2*k+1}, v{vTmp+5}")
    a("s_waitcnt lgkmcnt(0)\ns_barrier")
    rb = vKA
    for t in range(5):
        for sl in range(3):
            a(f"ds_read_b128 {vr(rb+4*(3*t+sl),4)}, v{vL8} offset:{RB+(sl*5+t)*1024}")
    hp = vS1
    a(f"s_mov_b32 s{sT}, 0x3f803f80\nv_mov_b32 v{vTmp}, 0\nv_mov_b32 v{vTmp+1}, 0")
    for t in range(5):
        for sl in range(3):
            for r in range(4): a(f"v_add_f32 v{own+4*t+r}, v{own+4*t+r}, v{rb+4*(3*t+sl)+r}")
        for k in range(2):
            a(f"v_cvt_pk_bf16_f32 v{hp+2*t+k}, v{own+4*t+2*k}, v{own+4*t+2*k+1}")
        if t == 4: a(f"v_cndmask_b32 v{hp+8}, 0, v{hp+8}, s[52:53]\nv_cndmask_b32 v{hp+9}, 0, v{hp+9}, s[52:53]")
        if t == 1: a(f"buffer_store_dwordx4 {vr(hp,4)}, v{vH0}, s[{sH}:{sH+3}], 0 offen{hf}")
        if t == 3: a(f"buffer_store_dwordx4 {vr(hp+4,4)}, v{vH0}, s[{sH}:{sH+3}], 0 offen offset:1024{hf}")
        if t == 4: a(f"buffer_store_dwordx2 {vr(hp+8,2)}, v{vH2}, s[{sH}:{sH+3}], 0 offen{hf}")
    for r in range(10):
        a(f"v_dot2_f32_bf16 v{vTmp}, v{hp+r}, s{sT}, v{vTmp}\nv_dot2_f32_bf16 v{vTmp+1}, v{hp+r}, v{hp+r}, v{vTmp+1}")
    xg_reduce_n(a, [vTmp, vTmp + 1], [vTmp + 2, vTmp + 3])
    a(f"buffer_store_dwordx2 {vr(vTmp,2)}, v{vT2}, s[{sST}:{sST+3}], 0 offen{hf}")
    T.flush(4, vT, vLane)
    a("L_k3_end:\ns_endpgm")
    return header(name) + a.text(), descriptor(name, 512, 256, 96 if ts else 64)
```

```python
from common import *
HB, CB = 0, 73728
K4_LDS = CB + 4608
def gen_k4(name, st_flags="", opts=None):
    opts = opts or {}
    a = Prog()
    ts = opts.get("ts")
    T = Stamps(a, ts, 2, 64, 4, 4)
    V = Regs("v", 1, 256)
    vL = V.alloc(); vL1 = V.alloc(); vH = V.alloc(); vHWe = V.alloc(); vHWo = V.alloc(); vCB = V.alloc(); vP = V.alloc()
    vT0 = V.alloc(); vT1 = V.alloc()
    vRS = V.alloc(4, 4); vNM = V.alloc(4, 4)
    vCS = V.alloc(8, 4)
    vTMP = V.alloc(8, 4)
    vPK = V.alloc(16, 4)
    vACC = V.alloc(32, 4)
    vA = V.alloc(72, 4)
    vB = V.alloc(32, 4)
    vX = vA
    vPRO = V.alloc(32, 4)
    def B(idx): return f"a[{4*idx}:{4*idx+3}]" if idx < 64 else vr(vB + 4 * (idx - 64), 4)
    def Breadop(idx, tag=None):
        return f"ds_read_b128 {B(idx)}, v{vL} offset:{idx*1024}" if idx < 64 else f"ds_read_b128 {B(idx)}, v{vL1} offset:{(idx-64)*1024}"
    sW, sH, sST, sCS, sB1, sP = 8, 12, 16, 20, 24, 28
    sWave, sJ, sI, sStream, sPo, sCnt, sT, sT2, sPs = 32, 33, 34, 35, 36, 37, 38, 39, 40

    a("s_cmp_ge_u32 s2, 256\ns_cbranch_scc1 L_k4_end")
    T.stamp(0)
    a(f"s_load_dwordx2 s[4:5], s[0:1], {KA_WS}")
    a(f"s_load_dwordx2 s[6:7], s[0:1], {KA_B1}")
    a(f"v_lshrrev_b32 v{vT0}, 6, v0")
    a(f"v_readfirstlane_b32 s{sWave}, v{vT0}")
    mp = opts.get("k4map", 1)
    lg = {1: 0, 2: 1, 4: 2, 8: 3}[mp]
    a(f"s_and_b32 s{sJ}, s2, {8//mp-1}\ns_lshl_b32 s{sJ}, s{sJ}, {lg}\ns_lshr_b32 s{sT}, s2, 3\ns_and_b32 s{sT}, s{sT}, {mp-1}\ns_add_u32 s{sJ}, s{sJ}, s{sT}")
    a(f"s_and_b32 s{sI}, s2, 7\ns_lshr_b32 s{sI}, s{sI}, {3-lg}\ns_mul_i32 s{sI}, s{sI}, {32//mp}\ns_lshr_b32 s{sT}, s2, {3+lg}\ns_add_u32 s{sI}, s{sI}, s{sT}")
    a(f"v_and_b32 v{vT1}, 63, v0\nv_lshlrev_b32 v{vL}, 4, v{vT1}\nv_add_u32 v{vL1}, 0x10000, v{vL}")
    a(f"v_and_b32 v{vTMP}, 15, v0\nv_bfe_u32 v{vTMP+1}, v0, 4, 2")
    a(f"v_lshlrev_b32 v{vTMP+2}, 6, v{vTMP}\nv_lshl_add_u32 v{vTMP+2}, v{vTMP+1}, 4, v{vTMP+2}")
    a(f"s_mul_i32 s{sT}, s{sJ}, 576\ns_mul_i32 s{sT2}, s{sWave}, 144\ns_add_u32 s{sT}, s{sT}, s{sT2}")
    a(f"v_lshlrev_b32 v{vTMP+3}, 2, v{vT1}\nv_add_u32 v{vTMP+3}, s{sT}, v{vTMP+3}")
    a(f"v_lshlrev_b32 v{vTMP+4}, 1, v{vTMP+3}\nv_lshlrev_b32 v{vTMP+3}, 2, v{vTMP+3}")
    a("s_waitcnt lgkmcnt(0)")
    T.stamp(1)
    a(f"s_lshl_b32 s{sT}, s{sI}, 12"); srd(a, sST, 4, WS_ST, 4096, sT)
    srd(a, sCS, 4, WS_CS, SZ_CS)
    srd(a, sB1, 6, 0, F * 2)
    a(f"s_mul_i32 s{sT}, s{sI}, {64*1152}"); srd(a, sH, 4, WS_H, 64 * 1152, sT)
    a(f"s_lshl_b32 s{sT}, s{sJ}, 2\ns_add_u32 s{sT}, s{sT}, s{sWave}\ns_mul_i32 s{sT}, s{sT}, {324*1024}")
    srd(a, sW, 4, WS_W, 324 * 1024, sT)
    for mt in range(4):
        a(f"buffer_load_dwordx4 {vr(vPRO+4*mt,4)}, v{vTMP+2}, s[{sST}:{sST+3}], 0 offen offset:{mt*1024}")
    for p in range(3):
        a(f"s_mov_b32 s{sT}, {p*F*4}")
        a(f"buffer_load_dwordx4 {vr(vPRO+16+4*p,4)}, v{vTMP+3}, s[{sCS}:{sCS+3}], s{sT} offen")
    a(f"buffer_load_dwordx2 {vr(vPRO+28,2)}, v{vTMP+4}, s[{sB1}:{sB1+3}], 0 offen")
    a(f"s_lshl_b32 s{sT}, s{sWave}, 10\ns_mul_i32 s{sT2}, s{sWave}, 18432")
    for s in range(18):
        a(f"s_add_u32 m0, s{sT}, {HB + s*4096 - (s%4)*1024}")
        a(f"buffer_load_dwordx4 v{vL}, s[{sH}:{sH+3}], s{sT2} offen offset:{(s%4)*1024} lds", tag="hdma")
        if s % 4 == 3: a(f"s_add_u32 s{sT2}, s{sT2}, 4096")
    a(f"s_mov_b32 s{sStream}, 0")
    def aload(q):
        L = [(f"buffer_load_dwordx4 {vr(vA+12*q+4*ss,4)}, v{vL}, s[{sW}:{sW+3}], s{sStream} offen offset:{ss*1024}", f"A{q}") for ss in range(3)]
        L.append(f"s_add_u32 s{sStream}, s{sStream}, 3072")
        return L
    def put(x):
        if isinstance(x, tuple): a(x[0], tag=x[1])
        else: a(x)
    for q in range(5):
        for x in aload(q): put(x)
    T.stamp(2)
    a(f"s_mul_i32 s{sT}, s{sJ}, {SZ_P//8}\ns_mul_i32 s{sT2}, s{sI}, {72*1024}\ns_add_u32 s{sT}, s{sT}, s{sT2}")
    srd(a, sP, 4, WS_P, 72 * 1024, sT)
    a(f"s_mul_i32 s{sT}, s{sWave}, 9")
    a(f"s_add_u32 s{sT2}, s{sT}, 1\ns_lshr_b32 s{sPo}, s{sT2}, 1\ns_lshl_b32 s{sPo}, s{sPo}, 12")
    a(f"s_lshr_b32 s{sPs}, s{sWave}, 1\ns_mul_i32 s{sPs}, s{sPs}, 9\ns_add_u32 s{sPs}, s{sPs}, 4\ns_lshl_b32 s{sPs}, s{sPs}, 12")
    a(f"s_and_b32 s{sCnt}, s{sWave}, 1\ns_lshl_b32 s{sCnt}, s{sCnt}, 3\ns_add_u32 s{sPs}, s{sPs}, s{sCnt}")
    a(f"s_lshr_b32 s{sCnt}, s{sT}, 1\ns_lshl_b32 s{sCnt}, s{sCnt}, 12\ns_and_b32 s{sT}, s{sT}, 1\ns_lshl_b32 s{sT}, s{sT}, 3\ns_add_u32 s{sCnt}, s{sCnt}, s{sT}")
    a(f"v_add_u32 v{vHWe}, s{sCnt}, v{vL}")
    a(f"s_lshr_b32 s{sCnt}, s{sT2}, 1\ns_lshl_b32 s{sCnt}, s{sCnt}, 12\ns_and_b32 s{sT2}, s{sT2}, 1\ns_lshl_b32 s{sT2}, s{sT2}, 3\ns_add_u32 s{sCnt}, s{sCnt}, s{sT2}")
    a(f"v_add_u32 v{vHWo}, s{sCnt}, v{vL}")
    a(f"s_mul_i32 s{sT}, s{sWave}, 1152\ns_add_u32 s{sT}, s{sT}, {CB}")
    a(f"v_lshlrev_b32 v{vCB}, 5, v{vTMP+1}\nv_add_u32 v{vCB}, s{sT}, v{vCB}")
    a(f"v_lshlrev_b32 v{vTMP+5}, 5, v{vT1}\nv_add_u32 v{vTMP+5}, s{sT}, v{vTMP+5}")
    a(f"s_mov_b32 s{sT}, {hex(f2u(1.0/576))}\ns_mov_b32 s{sT2}, {hex(f2u(1e-5))}")
    for mt in range(4):
        b = vPRO + 4 * mt
        a(f"v_add_f32 v{b}, v{b}, v{b+2}\nv_add_f32 v{b+1}, v{b+1}, v{b+3}")
    T.stamp(3)
    xg_reduce_n(a, [vPRO + 4 * mt + k for mt in range(4) for k in range(2)], [vPRO + 4 * mt + 2 + k for mt in range(4) for k in range(2)])
    for mt in range(4):
        b = vPRO + 4 * mt
        a(f"v_mul_f32 v{b}, s{sT}, v{b}\nv_mul_f32 v{b+1}, s{sT}, v{b+1}")
        a(f"v_fma_f32 v{b+1}, -v{b}, v{b}, v{b+1}\nv_max_f32 v{b+1}, 0, v{b+1}\nv_add_f32 v{b+1}, s{sT2}, v{b+1}")
        a(f"v_rsq_f32 v{vRS+mt}, v{b+1}")
    for mt in range(4):
        a(f"v_mul_f32 v{vNM+mt}, -v{vPRO+4*mt}, v{vRS+mt}")
    c = vPRO + 16
    for r in range(4):
        a(f"v_add_f32 v{c+r}, v{c+r}, v{c+4+r}\nv_add_f32 v{c+r}, v{c+r}, v{c+8+r}")
    a(f"v_lshlrev_b32 v{c+4}, 16, v{c+12}\nv_and_b32 v{c+5}, 0xffff0000, v{c+12}\nv_lshlrev_b32 v{c+6}, 16, v{c+13}\nv_and_b32 v{c+7}, 0xffff0000, v{c+13}")
    a(f"v_cmp_gt_u32 vcc, 36, v{vT1}\ns_and_saveexec_b64 s[42:43], vcc")
    a(f"ds_write_b128 v{vTMP+5}, {vr(c,4)}\nds_write_b128 v{vTMP+5}, {vr(c+4,4)} offset:16")
    a("s_mov_b64 exec, s[42:43]")
    a("s_waitcnt lgkmcnt(0)")
    T.stamp(4)
    a.wait_vm("hdma")
    a("s_barrier")

    def mfmas(X):
        L = []
        for q in range(6):
            for mt in range(4):
                for ss in range(3):
                    s = 3 * q + ss
                    acc = vr(vACC + 16 * X + 4 * mt, 4)
                    L.append(f"v_mfma_f32_16x16x32_bf16 {acc}, {vr(vA+12*q+4*ss,4)}, {B(4*s+mt)}, {acc if s else 0}")
        return L
    def breads(q): return [Breadop(4 * (3 * q + ss) + mt) for mt in range(4) for ss in range(3)]
    def emit_tile(X, fill, first=False):
        M = mfmas(X)
        nf = len(fill); fi = 0
        for q in range(6):
            grp = M[12 * q:12 * q + 12]
            own = aload((q - 1) % 6)
            if first and q < 5: own = interleave(breads(q + 1), own, 0)
            lo = 4 if q == 0 else 0
            want = (nf * (12 * (q + 1) - 4) + 67) // 68
            ex = fill[fi:want]; fi = want
            if q == 0:
                seq = interleave(grp[:4], own[:] if not first else own[:5], 0) + interleave(grp[4:], (own[5:] if first else []) + ex, 0)
            else:
                seq = interleave(grp, merge(own, ex), 0)
            a.wait_vm(f"A{q}")
            for x in seq: put(x)
        assert fi >= nf
    def merge(x, y):
        if len(x) < len(y): x, y = y, x
        return interleave(x, y, 0) if x else []
    def cbread(off): return [f"ds_read_b128 {vr(vCS,4)}, v{vCB} offset:{off}", f"ds_read_b128 {vr(vCS+4,4)}, v{vCB} offset:{off+16}"]
    def epi1(X, vHW, cboff):
        L = []
        for mt in range(4):
            ac = vACC + 16 * X + 4 * mt; t = vTMP + 4 * (mt & 1)
            for r in range(4): L.append(f"v_fma_f32 v{t+r}, v{vNM+mt}, v{vCS+r}, v{vCS+4+r}")
            if mt == 3 and cboff is not None: L += cbread(cboff)
            for r in range(4): L.append(f"v_fma_f32 v{t+r}, v{ac+r}, v{vRS+mt}, v{t+r}")
            for r in range(4): L.append(f"v_mul_f32 v{t+r}, v{t+r}, abs(v{t+r})")
            L.append(f"v_cvt_pk_bf16_f32 v{t}, v{t}, v{t+1}"); L.append(f"v_cvt_pk_bf16_f32 v{t+1}, v{t+2}, v{t+3}")
            L.append(f"v_pk_max_i16 v{t}, v{t}, 0"); L.append(f"v_pk_max_i16 v{t+1}, v{t+1}, 0")
            L.append(f"ds_write_b64 v{vHW}, {vr(t,2)} offset:{mt*1024}")
        return L
    def epi2(X, odd):
        L = []
        for mt in range(4):
            ac = vACC + 16 * X + 4 * mt; p = vPK + 4 * mt + 2 * odd
            L.append(f"v_cvt_pk_bf16_f32 v{p}, v{ac}, v{ac+1}"); L.append(f"v_cvt_pk_bf16_f32 v{p+1}, v{ac+2}, v{ac+3}")
            if odd: L.append(f"buffer_store_dwordx4 {vr(vPK+4*mt,4)}, v{vL}, s[{sP}:{sP+3}], s{sPo} offen offset:{mt*1024}{st_flags}")
        if odd: L.append(f"s_add_u32 s{sPo}, s{sPo}, 4096")
        return L
    T.stamp(5)
    if ts: a("s_waitcnt lgkmcnt(0)")
    for x in breads(0): a(x)
    for x in cbread(0): a(x)
    emit_tile(0, [], first=True)
    a("s_waitcnt lgkmcnt(0)\ns_barrier")
    T.stamp(6)
    if ts: a("s_waitcnt lgkmcnt(0)")
    a(f"s_mov_b32 s{sCnt}, 0")
    def body1(it):
        emit_tile(1, epi1(0, vHWe, 128) + [f"v_add_u32 v{vHWe}, 0x1000, v{vHWe}"])
        emit_tile(0, epi1(1, vHWo, 256) + [f"v_add_u32 v{vHWo}, 0x1000, v{vHWo}", f"v_add_u32 v{vCB}, 0x100, v{vCB}"])
    a.loop("L_k4_p1", 4, body1, f"s_add_u32 s{sCnt}, s{sCnt}, 1\ns_cmp_lt_u32 s{sCnt}, 4\ns_cbranch_scc1 L_k4_p1")
    for x in epi1(0, vHWe, None): a(x)
    a("s_waitcnt lgkmcnt(0)\ns_barrier")
    T.stamp(7)
    if ts: a("s_waitcnt lgkmcnt(0)")
    for x in breads(0): a(x)
    emit_tile(0, [], first=True)
    a(f"s_mov_b32 s{sCnt}, 0")
    def body2(it):
        emit_tile(1, epi2(0, 0))
        emit_tile(0, epi2(1, 1))
    a.loop("L_k4_p2", 4, body2, f"s_add_u32 s{sCnt}, s{sCnt}, 1\ns_cmp_lt_u32 s{sCnt}, 4\ns_cbranch_scc1 L_k4_p2")
    T.stamp(8)
    for mt in range(4):
        ac = vACC + 4 * mt; p = vPK + 4 * mt
        a(f"v_cvt_pk_bf16_f32 v{p}, v{ac}, v{ac+1}\nv_cvt_pk_bf16_f32 v{p+1}, v{ac+2}, v{ac+3}")
        a(f"buffer_store_dwordx2 {vr(p,2)}, v{vL}, s[{sP}:{sP+3}], s{sPs} offen offset:{mt*1024}{st_flags}")
    T.flush(9, vT0, vT1)
    a("L_k4_end:\ns_endpgm")
    return header(name) + a.text(), descriptor(name, 512, 256, 96 if ts else 64)
```

```python
from common import *
def gen_k5(name, opts):
    ts = opts.get("ts"); of = opts.get("o_flags", "")
    a = Prog()
    T = Stamps(a, ts, 3, 64, 4, 4)
    a("s_cmp_ge_u32 s2, 576\ns_cbranch_scc1 L_k5_end")
    T.stamp(0)
    a(f"s_load_dwordx2 s[4:5], s[0:1], {KA_WS}")
    a(f"s_load_dwordx2 s[6:7], s[0:1], {KA_OUT}")
    a(f"s_load_dwordx2 s[8:9], s[0:1], {KA_B2}")
    a("s_mul_i32 s10, s2, 3641\ns_lshr_b32 s10, s10, 16")
    a("s_mul_i32 s11, s10, 18\ns_sub_u32 s11, s2, s11")
    a("v_lshlrev_b32 v1, 4, v0")
    a("s_lshl_b32 s12, s2, 12")
    a("v_add_u32 v1, s12, v1")
    a("v_lshrrev_b32 v2, 6, v0\nv_lshlrev_b32 v2, 4, v2\nv_and_b32 v3, 15, v0\nv_add_u32 v2, v2, v3")
    a("s_lshl_b32 s13, s10, 6\nv_add_u32 v2, s13, v2\nv_mul_u32_u24 v2, 1152, v2")
    a("v_bfe_u32 v3, v0, 4, 2\nv_lshlrev_b32 v3, 4, v3\ns_lshl_b32 s13, s11, 6\nv_add_u32 v3, s13, v3")
    a("v_add_u32 v2, v2, v3")
    a("s_waitcnt lgkmcnt(0)")
    srd(a, 16, 4, WS_P, SZ_P)
    srd(a, 20, 4, WS_H, SZ_H)
    srd(a, 24, 8, 0, D * 2)
    srd(a, 28, 6, 0, S * D * 2)
    PL = SZ_P // 8
    for j in range(8):
        a(f"s_mov_b32 s33, {j*PL}") if j else None
        a(f"buffer_load_dwordx4 v[{8+4*j}:{11+4*j}], v1, s[16:19], {'s33' if j else '0'} offen")
    a("v_lshrrev_b32 v4, 6, v0\ns_lshl_b32 s13, s10, 2\nv_add_u32 v4, s13, v4\nv_mul_u32_u24 v4, 18432, v4\nv_and_b32 v5, 63, v0\nv_lshl_add_u32 v4, v5, 4, v4\ns_lshl_b32 s13, s11, 10")
    a("buffer_load_dwordx4 v[40:43], v4, s[20:23], s13 offen")
    a("buffer_load_dwordx4 v[44:47], v3, s[24:27], 0 offen")
    for j in range(8):
        for d in range(4):
            src = 8 + 4 * j + d
            if j == 0:
                a(f"v_lshlrev_b32 v{48+2*d}, 16, v{src}")
                a(f"v_and_b32 v{49+2*d}, 0xffff0000, v{src}")
            else:
                a(f"v_lshlrev_b32 v56, 16, v{src}")
                a(f"v_and_b32 v57, 0xffff0000, v{src}")
                a(f"v_add_f32 v{48+2*d}, v{48+2*d}, v56")
                a(f"v_add_f32 v{49+2*d}, v{49+2*d}, v57")
    for base in (44, 40):
        for d in range(4):
            a(f"v_lshlrev_b32 v56, 16, v{base+d}")
            a(f"v_and_b32 v57, 0xffff0000, v{base+d}")
            a(f"v_add_f32 v{48+2*d}, v{48+2*d}, v56")
            a(f"v_add_f32 v{49+2*d}, v{49+2*d}, v57")
    for d in range(4):
        a(f"v_cvt_pk_bf16_f32 v{60+d}, v{48+2*d}, v{49+2*d}")
    a(f"buffer_store_dwordx4 v[60:63], v2, s[28:31], 0 offen{of}")
    T.flush(1, 1, 2)
    a("L_k5_end:\ns_endpgm")
    return header(name) + a.text(), descriptor(name, 64, 64, 96 if ts else 48)
```

```python
import sys
from common import *
from k1 import gen_k1, K1_LDS
from k3 import gen_k3, K3_LDS
from k4 import gen_k4, K4_LDS
from k5 import gen_k5
NAME = "sequential_preLN__linear_attn_block__dense_activation_squared_relu__prompt"
def dbg_kernel():
    a = Prog()
    a("s_cmp_ge_u32 s2, 1\ns_cbranch_scc1 L_dbg_end")
    a(f"s_load_dwordx4 s[4:7], s[0:1], {KA_DBG}")
    a("s_waitcnt lgkmcnt(0)")
    srd(a, 8, 6, WS_TS, 4 << 20); srd(a, 12, 4, 0, 256)
    tab = [(0,0),(0,1),(0,2),(1,0),(1,1),(1,3),(1,4),(2,0),(2,5),(2,6),(2,7),(2,8),(2,9),(3,0),(3,1),(0,0)]
    a("v_mov_b32 v1, 0")
    for l, (k, sl) in enumerate(tab):
        a(f"s_mov_b32 s20, {k*(1<<20) + 100*8*64 + 4*sl}\nv_writelane_b32 v1, s20, {l}")
    a("buffer_load_dword v2, v1, s[8:11], 0 offen")
    a("v_readfirstlane_b32 s20, v2\nv_subrev_u32 v2, s20, v2\nv_lshlrev_b32 v3, 2, v0")
    a("buffer_store_dword v2, v3, s[12:15], 0 offen")
    a("L_dbg_end:\ns_endpgm")
    return a.text()
def probe_kernel(kind):
    a = Prog()
    a("s_cmp_ge_u32 s2, 1\ns_cbranch_scc1 L_probe_end")
    if kind != "none":
        a(f"s_load_dwordx2 s[4:5], s[0:1], {KA_BX if kind == 'bx' else KA_WS}")
        a("s_waitcnt lgkmcnt(0)")
        srd(a, 8, 4, 0 if kind == "bx" else (100 << 20) if kind == "ws" else (250 << 20), S * D * 2)
        a("v_mov_b32 v1, 0")
        for k in range(20):
            a("buffer_load_dword v2, v1, s[8:11], 0 offen\nv_and_b32 v2, 0, v2\nv_add_u32 v1, 0x19000, v1\nv_add_u32 v1, v1, v2")
    a("L_probe_end:\ns_endpgm")
    return a.text()
def build(opts):
    if opts.get("tsc"): Stamps.op = "s_memtime"
    ref = open(f"cdna_kernels/{NAME}.s.ref").read().split("\n")
    head = [l for l in ref if l.startswith(";") and "@launch" not in l and "Override launch" not in l and "grid=ceil" not in l and l.startswith("; ") and not l.startswith(";    ;")]
    head = [l for l in ref[:12]]
    ks = [("qkv_kernel", gen_k1("qkv_kernel", opts), 256, 512, K1_LDS),
          ("attn_kernel", gen_k3("attn_kernel", opts), 256, 256, K3_LDS),
          ("ffn_kernel", gen_k4("ffn_kernel", opts.get("p_flags", ""), opts), 256, 256, K4_LDS),
          ("reduce_kernel", gen_k5("reduce_kernel", opts), 576, 256, 0)]
    out = list(head)
    if opts.get("probe"): out.append("; @launch kernel=probe_kernel grid=(1,1,1) block=(64,1,1) lds=0")
    for n, _, g, b, l in ks: out.append(f"; @launch kernel={n} grid=({g},1,1) block=({b},1,1) lds={l}")
    if opts.get("dbgk"):
        out.append("; @launch kernel=dbg_kernel grid=(1,1,1) block=(64,1,1) lds=0")
    for k in range(opts.get("dummy", 0)): out.append("; @launch kernel=dummy_kernel grid=(256,1,1) block=(256,1,1) lds=0")
    out.append('.amdgcn_target "amdgcn-amd-amdhsa--gfx950"')
    txt = "\n".join(out) + "\n"
    for n, (t, d), *_ in ks: txt += t
    if opts.get("dummy"): txt += header("dummy_kernel") + "  s_endpgm\n"
    if opts.get("dbgk"): txt += header("dbg_kernel") + dbg_kernel()
    if opts.get("probe"): txt += header("probe_kernel") + probe_kernel(opts["probe"])
    for n, (t, d), *_ in ks: txt += d
    if opts.get("dummy"): txt += descriptor("dummy_kernel", 8, 8, 16)
    if opts.get("dbgk"): txt += descriptor("dbg_kernel", 32, 32, 48)
    if opts.get("probe"): txt += descriptor("probe_kernel", 32, 32, 48)
    return txt
if __name__ == "__main__":
    opts = {}
    outp = f"cdna_kernels/{NAME}.s"
    for x in sys.argv[1:]:
        k, v = x.split("=", 1)
        if k == "out": outp = v
        else: opts[k] = int(v) if v.isdigit() else (" " + v.replace("+", " ") if k.endswith("flags") else v)
    open(outp, "w").write(build(opts))
```

```python
import sys
from common import *
from k1 import gen_k1, K1_LDS
from k3 import gen_k3, K3_LDS
from k4 import gen_k4, K4_LDS
from k5 import gen_k5
NAME = "sequential_preLN__linear_attn_block__dense_activation_squared_relu__prompt"
def dbg_kernel():
    a = Prog()
    a("s_cmp_ge_u32 s2, 1\ns_cbranch_scc1 L_dbg_end")
    a(f"s_load_dwordx4 s[4:7], s[0:1], {KA_DBG}")
    a("s_waitcnt lgkmcnt(0)")
    srd(a, 8, 6, WS_TS, 4 << 20); srd(a, 12, 4, 0, 256)
    tab = [(0,0),(0,1),(0,2),(1,0),(1,1),(1,3),(1,4),(2,0),(2,5),(2,6),(2,7),(2,8),(2,9),(3,0),(3,1),(0,0)]
    a("v_mov_b32 v1, 0")
    for l, (k, sl) in enumerate(tab):
        a(f"s_mov_b32 s20, {k*(1<<20) + 100*8*64 + 4*sl}\nv_writelane_b32 v1, s20, {l}")
    a("buffer_load_dword v2, v1, s[8:11], 0 offen")
    a("v_readfirstlane_b32 s20, v2\nv_subrev_u32 v2, s20, v2\nv_lshlrev_b32 v3, 2, v0")
    a("buffer_store_dword v2, v3, s[12:15], 0 offen")
    a("L_dbg_end:\ns_endpgm")
    return a.text()
def probe_kernel(kind):
    a = Prog()
    a(f"s_cmp_ge_u32 s2, {8 if kind == 'code' else 1}\ns_cbranch_scc1 L_probe_end")
    if kind == "code":
        a.raw("s_getpc_b64 s[4:5]\nL_probe_pc:\ns_sub_u32 s4, s4, L_probe_pc-qkv_kernel\ns_subb_u32 s5, s5, 0")
        a.raw("s_mov_b32 s8, s4\ns_and_b32 s9, s5, 0xffff\ns_mov_b32 s10, L_probe_pc-qkv_kernel\ns_mov_b32 s11, 0x20000")
        a("v_lshlrev_b32 v1, 7, v0\nv_add_u32 v2, 0x8000, v1")
        a("buffer_load_dword v3, v1, s[8:11], 0 offen\nbuffer_load_dword v4, v2, s[8:11], 0 offen\ns_waitcnt vmcnt(0)")
    elif kind != "none":
        a(f"s_load_dwordx2 s[4:5], s[0:1], {KA_BX if kind == 'bx' else KA_WS}")
        a("s_waitcnt lgkmcnt(0)")
        srd(a, 8, 4, 0 if kind == "bx" else (100 << 20) if kind == "ws" else (250 << 20), S * D * 2)
        a("v_mov_b32 v1, 0")
        for k in range(20):
            a("buffer_load_dword v2, v1, s[8:11], 0 offen\nv_and_b32 v2, 0, v2\nv_add_u32 v1, 0x19000, v1\nv_add_u32 v1, v1, v2")
    a("L_probe_end:\ns_endpgm")
    return a.text()
def build(opts):
    if opts.get("tsc"): Stamps.op = "s_memtime"
    ref = open(f"cdna_kernels/{NAME}.s.ref").read().split("\n")
    head = [l for l in ref if l.startswith(";") and "@launch" not in l and "Override launch" not in l and "grid=ceil" not in l and l.startswith("; ") and not l.startswith(";    ;")]
    head = [l for l in ref[:12]]
    ks = [("qkv_kernel", gen_k1("qkv_kernel", opts), 256, 512, K1_LDS),
          ("attn_kernel", gen_k3("attn_kernel", opts), 256, 256, K3_LDS),
          ("ffn_kernel", gen_k4("ffn_kernel", opts.get("p_flags", ""), opts), 256, 256, K4_LDS),
          ("reduce_kernel", gen_k5("reduce_kernel", opts), 576, 256, 0)]
    out = list(head)
    if opts.get("probe"): out.append("; @launch kernel=probe_kernel grid=(8,1,1) block=(256,1,1) lds=0" if opts["probe"] == "code" else "; @launch kernel=probe_kernel grid=(1,1,1) block=(64,1,1) lds=0")
    for n, _, g, b, l in ks: out.append(f"; @launch kernel={n} grid=({g},1,1) block=({b},1,1) lds={l}")
    if opts.get("dbgk"):
        out.append("; @launch kernel=dbg_kernel grid=(1,1,1) block=(64,1,1) lds=0")
    for k in range(opts.get("dummy", 0)): out.append("; @launch kernel=dummy_kernel grid=(256,1,1) block=(256,1,1) lds=0")
    out.append('.amdgcn_target "amdgcn-amd-amdhsa--gfx950"')
    txt = "\n".join(out) + "\n"
    for n, (t, d), *_ in ks: txt += t
    if opts.get("dummy"): txt += header("dummy_kernel") + "  s_endpgm\n"
    if opts.get("dbgk"): txt += header("dbg_kernel") + dbg_kernel()
    if opts.get("probe"): txt += header("probe_kernel") + probe_kernel(opts["probe"])
    for n, (t, d), *_ in ks: txt += d
    if opts.get("dummy"): txt += descriptor("dummy_kernel", 8, 8, 16)
    if opts.get("dbgk"): txt += descriptor("dbg_kernel", 32, 32, 48)
    if opts.get("probe"): txt += descriptor("probe_kernel", 32, 32, 48)
    return txt
if __name__ == "__main__":
    opts = {}
    outp = f"cdna_kernels/{NAME}.s"
    for x in sys.argv[1:]:
        k, v = x.split("=", 1)
        if k == "out": outp = v
        else: opts[k] = int(v) if v.isdigit() else (" " + v.replace("+", " ") if k.endswith("flags") else v)
    open(outp, "w").write(build(opts))
```

```python
from common import *
K1_LDS = 163840
SL = 16384 + 18432
STL = 4 * SL
CSL = STL + 1024
XB = 0

def gen_sw(a, st_flags, T, ldf, opts):
    sJ, sN, sT, sT2, sCb, sTh, sLds = 32, 33, 34, 35, 36, 37, 38
    sSrc, sDst, sAux = 8, 12, 16
    ONES = 39
    sD = 40
    vLane, vOff, vRd, vT, vT2, vL16 = 1, 2, 3, 8, 9, 10
    vAcc = 12
    vF = 16
    a(f"s_load_dwordx2 s[4:5], s[0:1], {KA_WS}")
    a(f"s_load_dwordx4 s[20:23], s[0:1], {KA_W1}")
    a(f"s_load_dwordx2 s[24:25], s[0:1], {KA_W2}")
    a(f"s_load_dwordx2 s[26:27], s[0:1], {KA_WO}")
    a(f"s_load_dwordx2 s[28:29], s[0:1], {KA_DBG}")
    a(f"v_lshrrev_b32 v{vT}, 6, v0\nv_readfirstlane_b32 s{sT}, v{vT}")
    a(f"s_and_b32 s{sJ}, s2, 7\ns_lshr_b32 s{sN}, s2, 3\ns_lshl_b32 s{sN}, s{sN}, 3\ns_add_u32 s{sN}, s{sN}, s{sT}")
    a(f"s_mul_i32 s{sLds}, s{sT}, 20480")
    a(f"v_and_b32 v{vLane}, 63, v0\nv_lshlrev_b32 v{vL16}, 4, v{vLane}")
    a("s_waitcnt lgkmcnt(0)")
    a(f"s_cmp_ge_u32 s{sN}, 54\ns_cbranch_scc1 L_sw_misc")
    a(f"s_cmp_ge_u32 s{sN}, 27\ns_cselect_b32 s44, 1, 0\ns_cselect_b32 s{sT}, 27, 0\ns_sub_u32 s{sN}, s{sN}, s{sT}")
    a(f"s_mul_i32 s{sCb}, s{sN}, 86\ns_lshr_b32 s{sCb}, s{sCb}, 8\ns_mul_i32 s{sT}, s{sCb}, 3\ns_sub_u32 s{sTh}, s{sN}, s{sT}")
    srd(a, sDst, 4, WS_W, SZ_W)
    for tt in range(4):
        a(f"s_lshl_b32 s{sT}, s{sCb}, 2\ns_add_u32 s{sT}, s{sT}, {tt}")
        a(f"s_mul_i32 s{sT2}, s{sT}, 57\ns_lshr_b32 s{sT2}, s{sT2}, 9")
        a(f"s_mul_i32 s45, s{sT2}, 9\ns_sub_u32 s{sT}, s{sT}, s45")
        a(f"s_and_b32 s45, s{sT2}, s44\ns_cmp_eq_u32 s{sT}, 0\ns_cselect_b32 s46, 8, -1\ns_mul_i32 s45, s45, s46\ns_add_u32 s{sT}, s{sT}, s45")
        a(f"s_mul_i32 s{sT}, s{sT}, 18\ns_mul_i32 s{sT2}, s{sT2}, 324\ns_add_u32 s{sT}, s{sT}, s{sT2}")
        a(f"s_mul_i32 s{sT2}, s{sJ}, 1296\ns_add_u32 s{sT}, s{sT}, s{sT2}\ns_mul_i32 s{sT2}, s44, 162\ns_add_u32 s{sT}, s{sT}, s{sT2}")
        a(f"s_mul_i32 s{sT2}, s{sTh}, 6\ns_add_u32 s{sT}, s{sT}, s{sT2}\ns_lshl_b32 s{sD+tt}, s{sT}, 10")
    a(f"s_mov_b32 s{ONES}, 0x3f803f80")
    a("s_cmp_eq_u32 s44, 1\ns_cbranch_scc1 L_sw_w2")
    common_tail = []
    for job in ("w1", "w2"):
        b = Prog() if False else a
        if job == "w2": a("L_sw_w2:")
        RS = 9216 if job == "w1" else 1152
        if job == "w1":
            a(f"s_mul_i32 s{sT}, s{sTh}, {192*RS}\ns_mul_i32 s{sT2}, s{sJ}, 1152\ns_add_u32 s{sT}, s{sT}, s{sT2}\ns_lshl_b32 s{sT2}, s{sCb}, 7\ns_add_u32 s{sT}, s{sT}, s{sT2}")
            a(f"s_sub_u32 s47, {D*F*2}, s{sT}")
            srd(a, sSrc, 20, 0, 0, sT)
        else:
            a(f"s_mul_i32 s{sT}, s{sJ}, 576\ns_mul_i32 s{sT2}, s{sTh}, 192\ns_add_u32 s{sT}, s{sT}, s{sT2}\ns_mul_i32 s{sT}, s{sT}, {RS}\ns_lshl_b32 s{sT2}, s{sCb}, 7\ns_add_u32 s{sT}, s{sT}, s{sT2}")
            a(f"s_sub_u32 s47, {D*F*2}, s{sT}")
            srd(a, sSrc, 24, 0, 0, sT)
        a(f"s_mov_b32 s{sSrc+2}, s47")
        a(f"v_lshrrev_b32 v{vT}, 3, v{vLane}\nv_mul_u32_u24 v{vOff}, {RS}, v{vT}")
        a(f"v_bfe_u32 v{vT}, v{vLane}, 4, 1\nv_lshlrev_b32 v{vT}, {1 if job=='w1' else 2}, v{vT}\nv_and_b32 v{vT2}, 7, v{vLane}\nv_xor_b32 v{vT}, v{vT}, v{vT2}")
        if job == "w1":
            a(f"v_xor_b32 v{vT2}, 4, v{vT}\nv_lshl_add_u32 v7, v{vT2}, 4, v{vOff}")
        a(f"v_lshl_add_u32 v{vOff}, v{vT}, 4, v{vOff}")
        def dma(u):
            for pc in range(4):
                a(f"s_add_u32 m0, s{sLds}, {(u % 5)*4096 + pc*1024}")
                a(f"s_mov_b32 s{sT}, {(u*32 + pc*8)*RS}")
                vo = 7 if (job == "w1" and pc & 1) else vOff
                a(f"buffer_load_dwordx4 v{vo}, s[{sSrc}:{sSrc+3}], s{sT} offen{ldf} lds", tag=f"{job}u{u}")
        for u in range(5): dma(u)
        a(f"v_bfe_u32 v{vT}, v{vLane}, 2, 2")
        a(f"v_lshrrev_b32 v{vT2}, 4, v{vLane}")
        if job == "w1":
            a(f"v_lshl_add_u32 v11, v{vT2}, 3, v{vT}\nv_lshlrev_b32 v11, 7, v11")
            a(f"v_lshrrev_b32 v{vT}, 1, v{vT}\nv_and_b32 v{vT2}, 1, v{vT2}\nv_lshl_or_b32 v{vT}, v{vT2}, 1, v{vT}")
            a(f"v_and_b32 v{vT2}, 3, v{vLane}\nv_lshl_add_u32 v11, v{vT2}, 3, v11\nv_add_u32 v11, s{sLds}, v11")
            for tt in range(4):
                a(f"v_xor_b32 v{vT2}, {tt}, v{vT}\nv_lshl_add_u32 v{vRd+tt}, v{vT2}, 5, v11")
            hfo = 512
        else:
            a(f"v_lshl_add_u32 v11, v{vT2}, 2, v{vT}\nv_lshlrev_b32 v11, 7, v11\nv_add_u32 v11, s{sLds}, v11")
            a(f"v_lshrrev_b32 v{vT}, 1, v{vT}\nv_lshlrev_b32 v{vT}, 2, v{vT}\nv_and_b32 v{vT2}, 3, v{vLane}\nv_xor_b32 v{vT}, v{vT}, v{vT2}")
            for tt in range(4):
                a(f"v_xor_b32 v{vT2}, {4*(tt>>1)}, v{vT}\nv_lshl_add_u32 v{vRd+tt}, v{vT2}, 4, v11")
                if tt & 1: a(f"v_add_u32 v{vRd+tt}, 8, v{vRd+tt}")
            hfo = 2048
        if job == "w1":
            for tt in range(4): a(f"v_mov_b32 v{vAcc+tt}, 0")
        for u in range(6):
            a.wait_vm(f"{job}u{u}")
            f0 = vF + 16 * (u & 1)
            for tt in range(4):
                for hf in range(2):
                    a(f"ds_read_b64_tr_b16 {vr(f0+4*tt+2*hf,2)}, v{vRd+tt} offset:{(u%5)*4096 + hf*hfo}")
            if u == 0:
                a("s_waitcnt lgkmcnt(0)"); dma(5)
            for tt in range(4):
                a(f"buffer_store_dwordx4 {vr(f0+4*tt,4)}, v{vL16}, s[{sDst}:{sDst+3}], s{sD+tt} offen offset:{(u%4)*1024}{st_flags}")
            if u == 3:
                for tt in range(4): a(f"s_add_u32 s{sD+tt}, s{sD+tt}, 4096")
            if job == "w1":
                for d in range(4):
                    for tt in range(4):
                        a(f"v_dot2_f32_bf16 v{vAcc+tt}, v{f0+4*tt+d}, s{ONES}, v{vAcc+tt}")
        if job == "w1":
            xg_reduce_n(a, [vAcc + t for t in range(4)], [vF + t for t in range(4)])
            a(f"v_lshrrev_b32 v{vT2}, 4, v{vLane}")
            for tt in range(1, 4):
                a(f"v_cmp_eq_u32 vcc, {tt}, v{vT2}\nv_cndmask_b32 v{vAcc}, v{vAcc}, v{vAcc+tt}, vcc")
            srd(a, sAux, 4, WS_CS, SZ_CS)
            a(f"s_mul_i32 s{sT}, s{sTh}, {F}\ns_mul_i32 s{sT2}, s{sJ}, 576\ns_add_u32 s{sT}, s{sT}, s{sT2}\ns_lshl_b32 s{sT2}, s{sCb}, 6\ns_add_u32 s{sT}, s{sT}, s{sT2}\ns_lshl_b32 s{sT}, s{sT}, 2")
            a(f"v_lshlrev_b32 v{vT}, 2, v{vLane}")
            a(f"buffer_store_dword v{vAcc}, v{vT}, s[{sAux}:{sAux+3}], s{sT} offen{st_flags}")
        T.flush(1, 1, 2)
        a("s_endpgm")
        a.reset()
    a("L_sw_misc:")
    a(f"s_cmp_eq_u32 s{sN}, 54\ns_cbranch_scc1 L_sw_zero")
    a(f"s_cmp_lt_u32 s{sN}, 56\ns_cbranch_scc1 L_k1_end")
    a(f"s_and_b32 s{sT}, s{sN}, 1\ns_cmp_eq_u32 s{sT}, 1\ns_cbranch_scc1 L_k1_end")
    sG = 36
    a(f"s_sub_u32 s{sG}, s{sN}, 56\ns_lshr_b32 s{sG}, s{sG}, 1")
    a(f"s_mul_i32 s{sT}, s{sG}, {144*1152}\ns_mul_i32 s{sT2}, s{sJ}, 144\ns_add_u32 s{sT}, s{sT}, s{sT2}")
    a(f"s_sub_u32 s47, {D*D*2}, s{sT}\ns_min_u32 s47, s47, {144*1152}")
    srd(a, sSrc, 26, 0, 0, sT)
    a(f"s_mov_b32 s{sSrc+2}, s47")
    a(f"s_lshl_b32 s{sT}, s{sJ}, 2\ns_add_u32 s{sT}, s{sT}, s{sG}\ns_mul_i32 s{sT}, s{sT}, {25*1024}")
    srd(a, sDst, 4, WS_WO, 25 * 1024, sT)
    a(f"v_mul_u32_u24 v{vT}, 57, v{vLane}\nv_lshrrev_b32 v{vT}, 9, v{vT}\nv_mul_u32_u24 v{vT2}, 9, v{vT}\nv_sub_u32 v7, v{vLane}, v{vT2}")
    a(f"v_mul_u32_u24 v{vOff}, 1152, v{vT}\nv_lshl_add_u32 v{vOff}, v7, 4, v{vOff}")
    a(f"v_mov_b32 v11, {7*1152+16}\nv_mov_b32 v12, {8*1152+16-144}")
    for n in range(21):
        a(f"s_add_u32 m0, s{sLds}, {n*1024}")
        a(f"buffer_load_dwordx4 v{vOff}, s[{sSrc}:{sSrc+3}], 0 offen lds", tag="wo")
        if n < 20:
            a(f"v_cmp_eq_u32 vcc, 8, v7\nv_add_u32 v7, 1, v7\nv_cndmask_b32 v{vT}, v11, v12, vcc\nv_cndmask_b32 v7, v7, 0, vcc\nv_add_u32 v{vOff}, v{vOff}, v{vT}")
    a(f"v_bfe_u32 v{vT}, v{vLane}, 2, 2\nv_lshrrev_b32 v{vT2}, 4, v{vLane}")
    a(f"v_lshl_add_u32 v11, v{vT2}, 2, v{vT}\nv_mul_u32_u24 v11, 144, v11\nv_add_u32 v11, s{sLds}, v11")
    a(f"v_lshrrev_b32 v12, 1, v{vT2}\nv_and_b32 v13, 2, v{vT}\nv_add_u32 v12, v12, v13\nv_mul_u32_u24 v12, 36, v12")
    a(f"v_and_b32 v13, 1, v{vT2}\nv_lshl_add_u32 v12, v13, 1, v12\nv_and_b32 v13, 1, v{vT}\nv_add3_u32 v12, v12, v13, 16")
    a(f"v_mul_u32_u24 v12, 144, v12\nv_add_u32 v12, s{sLds}, v12")
    a(f"v_and_b32 v13, 3, v{vLane}")
    a(f"v_lshl_add_u32 v3, v13, 4, v11\nv_lshl_add_u32 v4, v13, 3, v11\nv_lshl_add_u32 v5, v13, 4, v12\nv_lshl_add_u32 v6, v13, 3, v12")
    a.wait_vm("wo")
    k = 0
    for v in range(5):
        for t in range(5):
            f0 = vF + 4 * (k % 8)
            col = (64 * (t >> 1) + 8 * (t & 1)) if t < 4 else 128
            if v < 4:
                ad = 3 if t < 4 else 4
                for hf in range(2):
                    a(f"ds_read_b64_tr_b16 {vr(f0+2*hf,2)}, v{ad} offset:{(36*v+20*hf)*144+col}")
            else:
                ad = 5 if t < 4 else 6
                a(f"ds_read_b64_tr_b16 {vr(f0,2)}, v{ad} offset:{col}")
                a(f"v_mov_b32 v{f0+2}, 0\nv_mov_b32 v{f0+3}, 0")
            if k % 4 == 0: a(f"s_mov_b32 s{sT}, {k*1024}")
            a(f"buffer_store_dwordx4 {vr(f0,4)}, v{vL16}, s[{sDst}:{sDst+3}], s{sT} offen offset:{(k%4)*1024}{st_flags}")
            k += 1
    T.flush(1, 1, 2)
    a("s_endpgm")
    a.reset()
    a("L_sw_zero:")
    a(f"s_mul_i32 s{sT}, s{sJ}, {4*KVH}")
    srd(a, sDst, 4, WS_KV, 4 * KVH, sT)
    srd(a, sAux, 28, 0, 256)
    for r in range(4): a(f"v_mov_b32 v{vF+r}, 0")
    for n in range(6):
        if n == 4: a(f"v_add_u32 v{vL16}, 4096, v{vL16}")
        a(f"buffer_store_dwordx4 {vr(vF,4)}, v{vL16}, s[{sDst}:{sDst+3}], 0 offen offset:{(n%4)*1024} sc0 sc1")
    a(f"s_lshl_b32 s{sT}, s{sJ}, 2\nv_mov_b32 v{vT}, s{sT}\nv_mov_b32 v{vT2}, 1")
    a("s_waitcnt vmcnt(0)")
    a(f"buffer_store_dword v{vT2}, v{vT}, s[{sAux}:{sAux+3}], 0 offen sc0 sc1")
    a("s_endpgm")
    a.reset()

def gen_k1(name, opts):
    st_flags = opts.get("sw_flags", ""); ts = opts.get("ts"); pqf = opts.get("pq_flags", "")
    a = Prog()
    T = Stamps(a, ts, 0, 82, 4, 8)
    tsk = int(ts) if ts else 0
    a("s_cmp_ge_u32 s2, 256\ns_cbranch_scc1 L_k1_end")
    T.stamp(0)
    a("s_cmp_ge_u32 s2, 64\ns_cbranch_scc1 L_k1_gemm")
    gen_sw(a, st_flags, T, opts.get("swld_flags", ""), opts)
    T.ws = 6
    a("L_k1_gemm:")
    V = Regs("v", 1, 256)
    vLane = V.alloc(); vT = V.alloc(); vT2 = V.alloc(); vL16 = V.alloc(); vG = V.alloc(); vM = V.alloc()
    vXd = V.alloc(2); vW = V.alloc(3)
    vXa = V.alloc(2); vXb = V.alloc(2); vRdM = V.alloc(); vRd4 = V.alloc(); vRdR = V.alloc()
    vS = V.alloc(8, 4)
    vOne = V.alloc(4, 4); vSum = V.alloc(4, 4); vGr = V.alloc(4, 4); vCs = V.alloc(20, 4)
    vXf = V.alloc(16, 4); vFr = V.alloc(40, 4); vAcc = V.alloc(36, 4); vTmp = V.alloc(16, 4)
    vSt = V.alloc(16, 4); vE = V.alloc(64, 4)
    sX, sW, sO, sDbg = 8, 12, 16, 20
    sWave, sJ, sI, sT, sT2, sRole, sRot, ONES = 32, 33, 34, 35, 36, 37, 38, 39
    sXo, sWo = 40, 50
    sLx, sLw, sLp, sRp, sTh = 59, 60, 63, 28, 29
    def ST(k):
        if tsk == k:
            a.raw("s_waitcnt lgkmcnt(0)"); T.stamp(1); a.raw("s_waitcnt lgkmcnt(0)")
    a(f"s_load_dwordx4 s[24:27], s[0:1], {KA_X}")
    a(f"s_load_dwordx4 s[4:7], s[0:1], {KA_DBG}")
    a(f"v_lshrrev_b32 v{vT}, 6, v0\nv_readfirstlane_b32 s{sWave}, v{vT}")
    a(f"s_cmp_ge_u32 s2, 192\ns_cselect_b32 s{sRole}, 1, 0\ns_cselect_b32 s{sT}, 128, 0")
    a(f"s_sub_u32 s{sT}, s2, s{sT}\ns_sub_u32 s{sT}, s{sT}, 64\ns_lshr_b32 s{sT}, s{sT}, 3")
    a(f"s_lshr_b32 s{sJ}, s{sT}, 1\ns_and_b32 s{sT}, s{sT}, 1\ns_and_b32 s{sI}, s2, 7\ns_lshl_b32 s{sI}, s{sI}, 1\ns_add_u32 s{sI}, s{sI}, s{sT}")
    a(f"s_lshl_b32 s{sT}, s{sJ}, s{sRole}\ns_add_u32 s{sRot}, s{sI}, s{sT}")
    a(f"s_mul_i32 s{sT}, s{sRot}, 57\ns_lshr_b32 s{sT}, s{sT}, 9\ns_mul_i32 s{sT}, s{sT}, 9\ns_sub_u32 s{sRot}, s{sRot}, s{sT}")
    a(f"v_and_b32 v{vLane}, 63, v0\nv_and_b32 v{vM}, 15, v0\nv_bfe_u32 v{vG}, v0, 4, 2\nv_lshlrev_b32 v{vL16}, 4, v{vLane}")
    a(f"s_lshl_b32 s{sT}, s{sI}, 7\ns_lshl_b32 s{sT2}, s{sWave}, 4\ns_add_u32 s{sT}, s{sT}, s{sT2}")
    a(f"v_lshrrev_b32 v{vT}, 3, v{vLane}\nv_add_u32 v{vT}, s{sT}, v{vT}\nv_mul_u32_u24 v{vT}, 1152, v{vT}")
    a(f"v_lshrrev_b32 v{vT2}, 4, v{vLane}\nv_and_b32 v{vTmp}, 7, v{vLane}\nv_xor_b32 v{vT2}, v{vT2}, v{vTmp}")
    a(f"v_lshl_add_u32 v{vXd}, v{vT2}, 4, v{vT}\nv_xor_b32 v{vT2}, 4, v{vT2}\nv_lshl_add_u32 v{vXd+1}, v{vT2}, 4, v{vT}\nv_add_u32 v{vXd+1}, {8*1152}, v{vXd+1}")
    a(f"s_mul_i32 s{sT}, s{sJ}, 144\ns_add_u32 s61, s{sT}, 1152\ns_lshl_b32 s{sT}, s{sT}, 1")
    a(f"s_cmp_eq_u32 s{sRole}, 1\ns_cselect_b32 s61, s{sT}, s61\ns_cselect_b32 s62, 0, {1152-144}")
    a(f"s_lshl_b32 s{sLx}, s{sWave}, 11\ns_add_u32 s{sLw}, s{sLx}, 16384\ns_lshl_b32 s{sLp}, s{sWave}, 8\ns_add_u32 s{sLp}, s{sLp}, 32768")
    for n in range(3):
        if n < 2: a(f"s_lshl_b32 s{sT}, s{sWave}, 7\ns_add_u32 s{sT}, s{sT}, {64*n}")
        else: a(f"s_lshl_b32 s{sT}, s{sWave}, 4\ns_add_u32 s{sT}, s{sT}, 1024")
        a(f"v_add_u32 v{vT}, s{sT}, v{vLane}")
        a(f"v_mul_u32_u24 v{vT2}, 3641, v{vT}\nv_lshrrev_b32 v{vT2}, 16, v{vT2}")
        a(f"v_mul_u32_u24 v{vTmp}, 18, v{vT2}\nv_sub_u32 v{vT}, v{vT}, v{vTmp}")
        a(f"v_and_b32 v{vTmp}, 0x33, v{vT2}\nv_bfe_u32 v{vTmp+1}, v{vT2}, 2, 1\nv_lshl_or_b32 v{vTmp}, v{vTmp+1}, 3, v{vTmp}\nv_bfe_u32 v{vTmp+1}, v{vT2}, 3, 1\nv_lshl_or_b32 v{vTmp}, v{vTmp+1}, 2, v{vTmp}")
        a(f"v_mul_u32_u24 v{vTmp}, 3456, v{vTmp}\nv_lshl_add_u32 v{vTmp}, v{vT}, 4, v{vTmp}\nv_add_u32 v{vTmp}, s61, v{vTmp}")
        a(f"v_cmp_lt_u32 vcc, 8, v{vT}\nv_add_u32 v{vTmp+1}, s62, v{vTmp}\nv_cndmask_b32 v{vW+n}, v{vTmp}, v{vTmp+1}, vcc")
    a("s_waitcnt lgkmcnt(0)")
    srd(a, sX, 24, 0, S * D * 2)
    srd(a, sW, 26, 0, D * 3 * D * 2)
    def dma(c):
        o = (c % 4) * SL; tg = f"c{c}"
        L = []
        for p in range(2):
            L.append([f"s_add_u32 m0, s{sLx}, {o + p*1024}", None, (f"buffer_load_dwordx4 v{vXd+p}, s[{sX}:{sX+3}], s{sXo+c} offen lds", tg)])
        for n in range(2):
            L.append([f"s_add_u32 m0, s{sLw}, {o + n*1024}", None, (f"buffer_load_dwordx4 v{vW+n}, s[{sW}:{sW+3}], s{sWo+c} offen lds", tg)])
        L.append([f"s_add_u32 m0, s{sLp}, {o}", "s_mov_b64 exec, 0xffff", (f"buffer_load_dwordx4 v{vW+2}, s[{sW}:{sW+3}], s{sWo+c} offen lds", tg), "s_mov_b64 exec, -1"])
        return L
    def put(x):
        if x is None: return
        if isinstance(x, tuple): a(x[0], tag=x[1])
        else: a(x)
    for c in range(9):
        a(f"s_lshl_b32 s{sXo+c}, s{sRot}, 7\ns_mul_i32 s{sWo+c}, s{sRot}, {64*3456}")
        if c < 8: a(f"s_add_u32 s{sRot}, s{sRot}, 1\ns_cmp_eq_u32 s{sRot}, 9\ns_cselect_b32 s{sRot}, 0, s{sRot}")
        if c == 0:
            for g in dma(0):
                for x in g: put(x)
    a(f"s_and_b32 s{sRp}, s{sWave}, 3\ns_lshr_b32 s{sTh}, s{sWave}, 2")
    a(f"s_lshl_b32 s{sT}, s{sRp}, 1\ns_add_u32 s{sT}, s{sT}, s{sTh}\ns_xor_b32 s{sT2}, s{sT}, 1")
    a(f"s_mov_b32 s30, s{sT}\ns_mov_b32 s31, s{sT2}\ns_lshl_b32 s{sT}, s{sT}, 11\ns_lshl_b32 s{sT2}, s{sT2}, 11")
    a(f"v_lshrrev_b32 v{vT}, 1, v{vM}\nv_xor_b32 v{vT}, v{vT}, v{vG}\nv_lshlrev_b32 v{vT}, 4, v{vT}\nv_lshl_add_u32 v{vT}, v{vM}, 7, v{vT}\nv_xor_b32 v{vT2}, 64, v{vT}")
    a(f"v_add_u32 v{vXa}, s{sT}, v{vT}\nv_add_u32 v{vXa+1}, s{sT}, v{vT2}\nv_add_u32 v{vXb}, s{sT2}, v{vT}\nv_add_u32 v{vXb+1}, s{sT2}, v{vT2}")
    a(f"v_bfe_u32 v{vT}, v{vLane}, 2, 2\nv_lshrrev_b32 v{vT2}, 1, v{vG}\nv_lshl_add_u32 v{vT}, v{vT2}, 4, v{vT}\nv_and_b32 v{vT2}, 1, v{vG}\nv_lshl_add_u32 v{vT}, v{vT2}, 2, v{vT}")
    a(f"v_mul_u32_u24 v{vT}, 288, v{vT}\nv_add_u32 v{vT}, 16384, v{vT}\nv_and_b32 v{vT2}, 3, v{vLane}\nv_lshl_add_u32 v{vRdM}, v{vT2}, 3, v{vT}")
    a(f"v_mul_u32_u24 v{vT2}, 72, v{vT2}\nv_add3_u32 v{vRdR}, v{vT}, v{vT2}, 32")
    a(f"s_mul_i32 s{sT}, s{sTh}, 216\ns_sub_u32 s{sT}, 216, s{sT}\nv_add_u32 v{vRd4}, s{sT}, v{vRdM}\ns_mul_i32 s{sT}, s{sTh}, 72\nv_add_u32 v{vRdM}, s{sT}, v{vRdM}")
    a(f"s_mov_b32 s{ONES}, 0x3f803f80")
    for k in range(4): a(f"v_mov_b32 v{vOne+k}, s{ONES}")
    for k in range(20): a(f"v_mov_b32 v{vCs+k}, 0")
    for g in dma(1):
        for x in g: put(x)
    ST(1)
    a(f"s_cmp_eq_u32 s{sRole}, 1\ns_cbranch_scc1 L_k1_q")
    for role in (0, 1):
        if role == 1:
            a("L_k1_q:")
            for c in range(2):
                for n in range(5): a.phantom_vm(f"c{c}")
        tcol = [(vRdM, 0), (vRdM, 40), (vRdM, 144), (vRdM, 184)] if role == 0 else [(vRdM, 40), (vRdM, 72), (vRdM, 184), (vRd4, 0)]
        adr = [vXa, vXa + 1, vXb, vXb + 1, vRdM, vRdR] + ([vRd4] if role else [])
        def reads(n):
            ks = n & 1; x = vXf + 8 * ks; f = vFr + 20 * ks
            L = [f"ds_read_b128 {vr(x,4)}, v{vXa+ks}", f"ds_read_b128 {vr(x+4,4)}, v{vXb+ks}"]
            for t in range(5):
                ad, col = tcol[t] if t < 4 else (vRdR, 0)
                L += [f"ds_read_b64_tr_b16 {vr(f+4*t+2*hf,2)}, v{ad} offset:{ks*9216 + hf*2304 + col}" for hf in range(2)]
            return L
        def newchunk(c):
            a.wait_vm(f"c{c}")
            a("s_barrier")
            if c in (0, 4, 8): ST(2 + c // 4)
            if c:
                d = SL if c % 4 else -3 * SL
                for r in adr: a(f"v_add_u32 v{r}, {hex(d & 0xffffffff)}, v{r}")
            if c <= 6: pend.extend(dma(c + 2))
        pend = []
        newchunk(0)
        for x in reads(0): a(x)
        for n in range(18):
            ks = n & 1; x = vXf + 8 * ks; f = vFr + 20 * ks
            M = []
            for t in range(5):
                for u in range(2 if t < 4 else 1):
                    ac = vr(vAcc + 8 * t + 4 * u, 4); xf = vr(x + 4 * u, 4); wf = vr(f + 4 * t, 4)
                    A_, B_ = (xf, wf) if role == 0 else (wf, xf)
                    M.append(f"v_mfma_f32_16x16x32_bf16 {ac}, {A_}, {B_}, {ac if n else 0}")
            R = reads(n + 1) if n < 17 else []
            one = vr(vOne, 4); xa = vr(x, 4)
            M.insert(3, f"v_mfma_f32_16x16x32_bf16 {vr(vSum,4)}, {one}, {xa}, {vr(vSum,4) if n else 0}")
            M.insert(7, f"v_mfma_f32_16x16x32_bf16 {vr(vGr,4)}, {xa}, {xa}, {vr(vGr,4) if n else 0}")
            ri = 0; post = None
            for j, m in enumerate(M):
                a(m)
                if post is not None:
                    for y in post: put(y)
                    post = None
                if j == 0 and n < 17 and (n + 1) % 2 == 0: newchunk((n + 1) // 2)
                want = (len(R) * (j + 1) + 9) // 10
                for y in R[ri:want]: a(y)
                ri = want
                if j in (1, 5, 9) and pend:
                    g = pend.pop(0)
                    if g[1] is None: put(g[0]); post = g[2:]
                    else:
                        for y in g: put(y)
            a(f"s_cmp_lg_u32 s{sRp}, {n & 3}\ns_cbranch_scc1 L_k1_cs{role}_{n}")
            a.cond_begin()
            for t in range(5):
                wf = vr(f + 4 * t, 4); c_ = vr(vCs + 4 * t, 4)
                a(f"v_mfma_f32_16x16x32_bf16 {c_}, {one if role == 0 else wf}, {wf if role == 0 else one}, {c_}")
            a.cond_end()
            a.raw(f"L_k1_cs{role}_{n}:")
        assert not pend
        ST(5)
        a(f"v_and_b32 v{vT}, 3, v{vM}\nv_lshrrev_b32 v{vT2}, 2, v{vM}")
        a(f"v_cmp_eq_u32 s[64:65], 1, v{vT}\nv_cmp_eq_u32 s[66:67], 2, v{vT}\nv_cmp_eq_u32 s[68:69], 3, v{vT}\nv_cmp_eq_u32 s[70:71], v{vT2}, v{vG}")
        a(f"s_mov_b32 s{sT}, {fhex(1.0/576)}\ns_mov_b32 s{sT2}, {fhex(1e-5)}")
        a(f"s_mul_i32 s72, s{sWave}, 320\ns_add_u32 s72, s72, {CSL}\ns_mul_i32 s73, s{sTh}, 1280\ns_add_u32 s73, s73, {CSL}")
        vCw, vCr = vXb + 1, vRd4
        if role == 0: a(f"v_lshlrev_b32 v{vCw}, 2, v{vM}")
        else: a(f"v_lshlrev_b32 v{vCw}, 4, v{vG}")
        a(f"v_add_u32 v{vCr}, s73, v{vCw}\nv_add_u32 v{vCw}, s72, v{vCw}")
        a(f"v_cndmask_b32 v{vGr}, v{vGr}, v{vGr+1}, s[64:65]\nv_cndmask_b32 v{vGr}, v{vGr}, v{vGr+2}, s[66:67]\nv_cndmask_b32 v{vGr}, v{vGr}, v{vGr+3}, s[68:69]")
        a(f"v_mul_f32 v{vS}, s{sT}, v{vSum}\nv_mul_f32 v{vS+1}, s{sT}, v{vGr}")
        a(f"v_fma_f32 v{vS+1}, -v{vS}, v{vS}, v{vS+1}\nv_max_f32 v{vS+1}, 0, v{vS+1}\nv_add_f32 v{vS+1}, s{sT2}, v{vS+1}")
        a(f"v_rsq_f32 v{vS+1}, v{vS+1}")
        a(f"s_lshl_b32 s{sT}, s30, 6\ns_add_u32 s{sT}, s{sT}, {STL}\ns_lshl_b32 s{sT2}, s31, 6\ns_add_u32 s{sT2}, s{sT2}, {STL}")
        a(f"v_mul_f32 v{vS}, -v{vS}, v{vS+1}")
        a(f"v_lshlrev_b32 v{vT}, 2, v{vM}\nv_add_u32 v{vT2}, s{sT}, v{vT}")
        for t in range(5):
            a(f"ds_write_b32 v{vCw}, v{vCs+4*t} offset:{64*t}" if role == 0 else f"ds_write_b128 v{vCw}, {vr(vCs+4*t,4)} offset:{64*t}")
        a(f"s_mov_b64 exec, s[70:71]\nds_write_b32 v{vT2}, v{vS+1}\nds_write_b32 v{vT2}, v{vS} offset:512\ns_mov_b64 exec, -1")
        sL2E, sEps = 61, 62
        a(f"s_mov_b32 s{sL2E}, {fhex(1.4426950408889634)}\ns_mov_b32 s{sEps}, {fhex(1e-6)}")
        def phi4(src, tmp, dst):
            for r in range(4): a(f"v_mul_f32 v{tmp+r}, s{sL2E}, v{src+r}")
            for r in range(4): a(f"v_exp_f32 v{tmp+r}, v{tmp+r} clamp")
            for r in range(4): a(f"v_max_f32 v{dst+r}, s{sEps}, v{src+r}")
            for r in range(4): a(f"v_add_f32 v{dst+r}, v{dst+r}, v{tmp+r}")
        if role == 1:
            a(f"v_add_u32 v{vT}, s{sT2}, v{vT}\nv_mov_b32 v{vTmp+2}, s{sEps}")
            a(f"s_lshl_b32 s64, s{sI}, 5\ns_add_u32 s64, s64, s{sJ}\ns_mul_i32 s64, s64, 4608")
            srd(a, sO, 6, WS_PQ, 8 * 18432, 64)
            a(f"s_mul_i32 s64, s30, 18432\ns_mul_i32 s65, s31, 18432\ns_add_u32 s66, s64, 4096\ns_lshl_b32 s67, s{sTh}, 10\ns_add_u32 s64, s64, s67\ns_add_u32 s65, s65, s67")
            a("s_waitcnt lgkmcnt(0)\ns_barrier")
            a(f"ds_read_b32 v{vSt}, v{vT2}\nds_read_b32 v{vSt+2}, v{vT2} offset:512\nds_read_b32 v{vSt+1}, v{vT}\nds_read_b32 v{vSt+3}, v{vT} offset:512")
            pr = [vCs, vE, vE + 20, vE + 40]
            for t in range(5):
                for p in range(4): a(f"ds_read_b128 {vr(pr[p]+4*t,4)}, v{vCr} offset:{320*p+64*t}")
            for t in range(5):
                for r in range(4): a(f"v_add_f32 v{vCs+4*t+r}, v{vCs+4*t+r}, v{vE+4*t+r}\nv_add_f32 v{vE+20+4*t+r}, v{vE+20+4*t+r}, v{vE+40+4*t+r}")
                for r in range(4): a(f"v_add_f32 v{vE+4*t+r}, v{vCs+4*t+r}, v{vE+20+4*t+r}")
            RSr, NMr = [vSt, vSt + 1], [vSt + 2, vSt + 3]
            PK = vFr
            for u in range(2):
                for t in ([0, 1, 2, 3, 4] if u == 0 else [0, 1, 2, 3]):
                    ac = vAcc + 8 * t + 4 * u; tm = vTmp + 4 + 4 * (t & 1)
                    for r in range(4): a(f"v_fma_f32 v{tm+r}, v{NMr[u]}, v{vE+4*t+r}, v{vTmp+2}")
                    for r in range(4): a(f"v_fma_f32 v{ac+r}, v{ac+r}, v{RSr[u]}, v{tm+r}")
                    phi4(ac, tm, ac)
                    p = PK + 12 * u + 2 * t
                    a(f"v_cvt_pk_bf16_f32 v{p}, v{ac}, v{ac+1}\nv_cvt_pk_bf16_f32 v{p+1}, v{ac+2}, v{ac+3}")
                    if t in (1, 3): a(f"buffer_store_dwordx4 {vr(p-2,4)}, v{vL16}, s[{sO}:{sO+3}], s{64+u} offen offset:{(t//2)*2048}{pqf}")
                    if t == 4:
                        a(f"v_lshlrev_b32 v{vT}, 3, v{vLane}")
                        a(f"buffer_store_dwordx2 {vr(p,2)}, v{vT}, s[{sO}:{sO+3}], s66 offen{pqf}")
            T.flush(2, vT, vT2)
            a("s_endpgm")
            continue
        srd(a, sDbg, 4, 0, 256)
        a(f"s_lshl_b32 s64, s{sJ}, 2\nv_mov_b32 v{vW}, s64")
        a(f"buffer_load_dword v{vW+1}, v{vW}, s[{sDbg}:{sDbg+3}], 0 offen sc0 sc1")
        a(f"v_lshlrev_b32 v{vT}, 4, v{vG}\nv_add_u32 v{vT2}, s{sT2}, v{vT}\nv_add_u32 v{vT}, s{sT}, v{vT}")
        vWA, vWB, vWR = vXa, vXa + 1, vXb
        a(f"s_lshl_b32 s64, s{sRp}, 10\ns_lshl_b32 s65, s{sTh}, 3\ns_add_u32 s66, s64, s65\ns_add_u32 s67, s66, {XB+8*4096}\nv_add_u32 v{vWR}, s67, v{vL16}")
        a(f"s_lshl_b32 s67, s{sTh}, 13\ns_add_u32 s66, s66, s67\nv_add_u32 v{vWA}, s66, v{vL16}\ns_xor_b32 s66, s66, 8\nv_add_u32 v{vWB}, s66, v{vL16}")
        a(f"v_cmp_gt_u32 s[64:65], 8, v{vM}\nv_mov_b32 v{vTmp}, s{sEps}\nv_mov_b32 v{vTmp+1}, 0\nv_cndmask_b32 v{vTmp+2}, v{vTmp+1}, v{vTmp}, s[64:65]")
        a("s_waitcnt lgkmcnt(0)\ns_barrier")
        a(f"ds_read_b128 {vr(vSt,4)}, v{vT}\nds_read_b128 {vr(vSt+4,4)}, v{vT} offset:512\nds_read_b128 {vr(vSt+8,4)}, v{vT2}\nds_read_b128 {vr(vSt+12,4)}, v{vT2} offset:512")
        for t in range(5):
            for p in range(4): a(f"ds_read_b32 v{vE+4*t+p}, v{vCr} offset:{320*p+64*t}")
        for t in (2, 3, 0, 1, 4):
            a(f"v_add_f32 v{vE+4*t}, v{vE+4*t}, v{vE+4*t+1}\nv_add_f32 v{vE+4*t+2}, v{vE+4*t+2}, v{vE+4*t+3}\nv_add_f32 v{vS+2+t}, v{vE+4*t}, v{vE+4*t+2}")
        tid = [0, 1, 4, 5]
        k = 0
        for t, u in [(2, 0), (3, 0), (2, 1), (3, 1), (0, 0), (1, 0), (0, 1), (1, 1), (4, 0)]:
            ac = vAcc + 8 * t + 4 * u; tm = vTmp + 4 + 4 * (k & 1); k += 1
            ep = vTmp + (0 if t < 2 else 1 if t < 4 else 2)
            for r in range(4): a(f"v_fma_f32 v{tm+r}, v{vSt+8*u+4+r}, v{vS+2+t}, v{ep}")
            for r in range(4): a(f"v_fma_f32 v{ac+r}, v{ac+r}, v{vSt+8*u+r}, v{tm+r}")
            if t < 2: phi4(ac, tm, ac)
            if t == 4:
                phi4(ac, tm, vTmp + 12)
                for r in range(4): a(f"v_cndmask_b32 v{ac+r}, v{ac+r}, v{vTmp+12+r}, s[64:65]")
            a(f"v_cvt_pk_bf16_f32 v{ac}, v{ac}, v{ac+1}\nv_cvt_pk_bf16_f32 v{ac+1}, v{ac+2}, v{ac+3}")
            if t < 4: a(f"ds_write_b64 v{vWB if u else vWA}, {vr(ac,2)} offset:{XB+tid[t]*4096}")
            else: a(f"ds_write_b64 v{vWR}, {vr(ac,2)}")
        sHH, sCl = sRp, sTh
        a(f"s_lshl_b32 s66, s{sHH}, 12\ns_add_u32 s66, s66, {XB}")
        a(f"s_cmp_eq_u32 s{sCl}, 0\ns_cselect_b32 s67, s66, {XB+8*4096}\ns_cselect_b32 s68, {XB+8*4096}, s66\ns_cselect_b64 s[70:71], -1, 0")
        a(f"v_add_u32 v{vRdM}, s66, v{vL16}\nv_add_u32 v{vRdR}, s67, v{vL16}\nv_add_u32 v{vT}, s68, v{vL16}")
        a(f"s_lshl_b32 s66, s{sJ}, 2\ns_add_u32 s66, s66, s{sHH}\ns_mul_i32 s66, s66, {KVH}")
        srd(a, sO, 6, WS_KV, KVH, 66)
        vA1, vA2, vA3 = vS, vS + 1, vS + 2
        a(f"v_lshrrev_b32 v{vTmp}, 1, v{vM}\nv_cmp_eq_u32 s[72:73], s{sHH}, v{vTmp}\nv_and_b32 v{vTmp+1}, 1, v{vM}\nv_lshlrev_b32 v{vTmp+1}, 2, v{vTmp+1}")
        a(f"v_mov_b32 v{vTmp+7}, {OOB}")
        a(f"v_cndmask_b32 v{vTmp+1}, v{vTmp+7}, v{vTmp+1}, s[72:73]")
        a(f"v_lshlrev_b32 v{vTmp+2}, 2, v{vM}")
        a(f"v_and_b32 v{vTmp+3}, 2, v{vG}\nv_lshlrev_b32 v{vTmp+3}, 4, v{vTmp+3}\nv_xor_b32 v{vTmp+3}, v{vTmp+3}, v{vTmp+2}")
        a(f"v_lshl_add_u32 v{vTmp+3}, v{vG}, 8, v{vTmp+3}\nv_lshl_add_u32 v{vTmp+4}, v{vG}, 5, v{vTmp+1}\nv_add_u32 v{vTmp+4}, {KV_RM}, v{vTmp+4}")
        a(f"v_cndmask_b32 v{vA1}, v{vTmp+4}, v{vTmp+3}, s[70:71]")
        a(f"s_cmp_eq_u32 s{sCl}, 0\ns_cselect_b32 s74, 64, 8\ns_cselect_b32 s77, 8, 64\ns_cselect_b32 s78, {KV_AR-KV_AM}, 0\ns_add_u32 s78, s78, {KV_AM}\ns_lshl_b32 s75, s74, 1\ns_add_u32 s76, s75, s74")
        a(f"v_cndmask_b32 v{vTmp+3}, v{vTmp+2}, v{vTmp+1}, s[70:71]\nv_add_u32 v{vTmp+3}, s78, v{vTmp+3}")
        a(f"s_lshr_b32 s79, s{sHH}, 1\ns_add_u32 s79, s79, 2\nv_cmp_eq_u32 s[72:73], s79, v{vG}\nv_cmp_eq_u32 vcc, 0, v{vG}")
        a(f"v_add_u32 v{vTmp+4}, s77, v{vTmp+3}\nv_add_u32 v{vTmp+5}, s77, v{vTmp+4}")
        a(f"v_cndmask_b32 v{vA2}, v{vTmp+7}, v{vTmp+3}, vcc\nv_cndmask_b32 v{vA2}, v{vA2}, v{vTmp+4}, s[72:73]\nv_cndmask_b32 v{vA3}, v{vTmp+7}, v{vTmp+5}, s[72:73]")
        a(f"s_and_b32 s79, s{sHH}, 1\ns_cmp_eq_u32 s79, 1\ns_cselect_b64 s[80:81], -1, 0")
        a(f"v_mov_b32 v{vS+3}, s{ONES}")
        a("s_waitcnt lgkmcnt(0)\ns_barrier")
        fV, fB1, fB2, fR = vE, vE + 16, vE + 32, vE + 48
        for k in range(4):
            a(f"ds_read_b128 {vr(fR+4*k,4)}, v{vL16} offset:{XB+8*4096+k*1024}")
        for k in range(4):
            a(f"ds_read_b128 {vr(fV+4*k,4)}, v{vRdM} offset:{4*4096+k*1024}")
            a(f"ds_read_b128 {vr(fB1+4*k,4)}, v{vRdR} offset:{k*1024}")
            a(f"ds_read_b128 {vr(fB2+4*k,4)}, v{vT} offset:{k*1024}")
        for r in range(16): a(f"v_cndmask_b32 v{fR+r}, v{fR+r}, v{vS+3}, s[64:65]")
        D1, D2 = vAcc, vAcc + 4
        for k in range(4):
            a(f"v_mfma_f32_16x16x32_bf16 {vr(D1,4)}, {vr(fV+4*k,4)}, {vr(fB1+4*k,4)}, {vr(D1,4) if k else 0}")
            a(f"v_mfma_f32_16x16x32_bf16 {vr(D2,4)}, {vr(fR+4*k,4)}, {vr(fB2+4*k,4)}, {vr(D2,4) if k else 0}")
        a("s_waitcnt vmcnt(0)")
        a.raw("L_k1_poll:")
        a(f"v_readfirstlane_b32 s79, v{vW+1}\ns_cmp_lg_u32 s79, 0\ns_cbranch_scc1 L_k1_go")
        a(f"s_sleep 2\nbuffer_load_dword v{vW+1}, v{vW}, s[{sDbg}:{sDbg+3}], 0 offen sc0 sc1\ns_waitcnt vmcnt(0)\ns_branch L_k1_poll")
        a.raw("L_k1_go:")
        a("s_nop 7")
        a(f"v_cndmask_b32 v{D2}, v{D2}, v{D2+2}, s[80:81]\nv_cndmask_b32 v{D2+1}, v{D2+1}, v{D2+3}, s[80:81]")
        for r in range(4):
            a(f"buffer_atomic_add_f32 v{D1+r}, v{vA1}, s[{sO}:{sO+3}], {'0' if r == 0 else 's'+str(73+r)} offen")
        a(f"buffer_atomic_add_f32 v{D2}, v{vA2}, s[{sO}:{sO+3}], 0 offen")
        a(f"buffer_atomic_add_f32 v{D2+1}, v{vA3}, s[{sO}:{sO+3}], 0 offen")
        T.flush(2, vT, vT2)
        a("s_endpgm")
        a.reset()
    a("L_k1_end:\ns_endpgm")
    return header(name) + a.text(), descriptor(name, 256, 256, 96)
```

```python
from common import *
RB = 0
KB = 4 * 3 * 5 * 1024
K3_LDS = KB + 4 * 8 * KVH
KV_Z = 1376
def gen_k3(name, opts):
    ts = opts.get("ts"); hf = opts.get("h_flags", "")
    a = Prog()
    T = Stamps(a, ts, 1, 64, 4, 4)
    V = Regs("v", 1, 256)
    vLane = V.alloc(); vM = V.alloc(); vG = V.alloc(); vL16 = V.alloc(); vT = V.alloc(); vT2 = V.alloc()
    vMM = V.alloc(); vRM = V.alloc(); vAM = V.alloc(4); vAR = V.alloc(4); vXo = V.alloc(); vX2 = V.alloc(); vL8 = V.alloc()
    vH0 = V.alloc(); vH1 = V.alloc(); vH2 = V.alloc(); vPF = V.alloc(2)
    vEps = V.alloc(4, 4)
    vRaw = V.alloc(24, 4)
    vKA = V.alloc(64, 4)
    vS1 = V.alloc(24, 4)
    vO = V.alloc(60, 4)
    vRr = V.alloc(4, 2)
    vXr = V.alloc(10, 4)
    vTmp = V.alloc(8, 4)
    vAc2 = V.alloc(28, 4)
    def PQ(mt, r, n): return vr(26 * mt + r, n, "a")
    def WO(v, t): return vr(104 + 4 * (5 * v + t), 4, "a")
    def ACr(mt, t):
        k = 5 * mt + t
        return ("a", 204 + 4 * k) if k < 13 else ("v", vAc2 + 4 * (k - 13))
    def AC(mt, t):
        f, b = ACr(mt, t); return vr(b, 4, f)
    sKV, sPQ, sWO, sX, sH, sST, sWS = 8, 12, 16, 20, 24, 28, 56
    sWave, sJ, sI, sT, sT2, sU = 32, 33, 34, 35, 36, 37
    sG = 40
    a("s_cmp_ge_u32 s2, 256\ns_cbranch_scc1 L_k3_end")
    T.stamp(0)
    a(f"s_load_dwordx2 s[4:5], s[0:1], {KA_WS}")
    a(f"s_load_dwordx2 s[6:7], s[0:1], {KA_X}")
    a(f"v_lshrrev_b32 v{vT}, 6, v0\nv_readfirstlane_b32 s{sWave}, v{vT}")
    a(f"s_lshr_b32 s{sJ}, s2, 5\ns_and_b32 s{sI}, s2, 7\ns_lshl_b32 s{sI}, s{sI}, 2\ns_bfe_u32 s{sT}, s2, 0x20003\ns_add_u32 s{sI}, s{sI}, s{sT}")
    a(f"v_and_b32 v{vLane}, 63, v0\nv_and_b32 v{vM}, 15, v0\nv_bfe_u32 v{vG}, v0, 4, 2\nv_lshlrev_b32 v{vL16}, 4, v{vLane}\nv_lshlrev_b32 v{vL8}, 3, v{vLane}")
    a(f"s_mul_i32 s{sU}, s{sWave}, {8*KVH}")
    a(f"s_lshl_b32 s{sT2}, s{sI}, 4\ns_add_u32 s{sT2}, s{sT2}, s{sWave}\ns_mul_i32 s{sT2}, s{sT2}, 4608")
    a("s_waitcnt lgkmcnt(0)")
    srd(a, sKV, 4, WS_KV, 8 * KVH, sU)
    srd(a, sPQ, 4, WS_PQ, 13 * 4608, sT2)
    a(f"s_add_u32 s{sU}, s{sU}, {KB}")
    for n in range(11):
        if n % 4 == 0: a(f"s_add_u32 m0, s{sU}, {n*1024}\ns_mov_b32 s{sT}, {n*1024}")
        a(f"buffer_load_dwordx4 v{vL16}, s[{sKV}:{sKV+3}], s{sT} offen offset:{(n%4)*1024} lds", tag=f"kv{n}")
    def pqload(mt):
        L = [f"s_mov_b32 s{sT}, {mt*4*4608}"]
        for pl, r in enumerate((2, 8, 14, 20)):
            L.append(f"buffer_load_dwordx4 {PQ(mt,r,4)}, v{vL16}, s[{sPQ}:{sPQ+3}], s{sT} offen offset:{pl*1024}")
        L.append(f"s_mov_b32 s{sT}, {mt*4*4608+4096}")
        L.append(f"buffer_load_dwordx2 {PQ(mt,0,2)}, v{vL8}, s[{sPQ}:{sPQ+3}], s{sT} offen")
        return L
    for x in pqload(0): a(x)
    a(f"s_lshl_b32 s{sT}, s{sJ}, 2\ns_add_u32 s{sT}, s{sT}, s{sWave}\ns_mul_i32 s{sT}, s{sT}, {25*1024}"); srd(a, sWO, 4, WS_WO, 25 * 1024, sT)
    srd(a, sX, 6, 0, S * D * 2)
    srd(a, sST, 4, WS_ST, SZ_ST)
    a(f"s_lshl_b32 s{sT}, s{sI}, 2\ns_add_u32 s{sT}, s{sT}, s{sWave}\ns_mul_i32 s{sT}, s{sT}, 18432"); srd(a, sH, 4, WS_H, 18432, sT)
    a(f"s_and_b32 s{sT}, s2, 7\ns_mul_i32 s{sT}, s{sT}, {SZ_W//8}"); srd(a, sWS, 4, WS_W, SZ_W // 8, sT)
    a(f"v_lshrrev_b32 v{vT}, 3, v{vM}\nv_lshlrev_b32 v{vT}, 1, v{vT}\nv_xor_b32 v{vT}, v{vT}, v{vG}\nv_lshlrev_b32 v{vT}, 4, v{vT}\nv_lshl_add_u32 v{vMM}, v{vM}, 6, v{vT}\nv_add_u32 v{vMM}, s{sU}, v{vMM}")
    a(f"v_lshlrev_b32 v{vRM}, 3, v{vM}\nv_add_u32 v{vRM}, s{sU}, v{vRM}")
    a(f"s_add_u32 s{sT}, s{sU}, {KV_Z}\nv_mov_b32 v{vTmp}, s{sT}\nv_and_b32 v{vT}, 3, v{vM}\nv_lshrrev_b32 v{vT2}, 2, v{vM}")
    a(f"s_add_u32 s{sT}, s{sU}, {KV_AM}\nv_lshlrev_b32 v{vTmp+1}, 6, v{vT}\nv_lshl_add_u32 v{vTmp+1}, v{vG}, 4, v{vTmp+1}\nv_add_u32 v{vTmp+1}, s{sT}, v{vTmp+1}")
    a(f"s_add_u32 s{sT}, s{sU}, {KV_AR}\nv_lshlrev_b32 v{vTmp+2}, 3, v{vT}\nv_add_u32 v{vTmp+2}, s{sT}, v{vTmp+2}")
    a(f"v_cmp_eq_u32 s[48:49], 0, v{vT}\nv_cmp_ne_u32 s[50:51], 3, v{vT}")
    for q in range(4):
        a(f"v_cmp_eq_u32 vcc, {q}, v{vT2}\nv_cmp_eq_u32 s[{sG+2*q}:{sG+2*q+1}], {q}, v{vG}")
        a("s_and_b64 vcc, vcc, s[50:51]\ns_or_b64 vcc, vcc, s[48:49]")
        a(f"v_cndmask_b32 v{vAM+q}, v{vTmp}, v{vTmp+1}, vcc\nv_cndmask_b32 v{vAR+q}, v{vTmp}, v{vTmp+2}, vcc")
    for x in pqload(1): a(x)
    a(f"v_mov_b32 v{vTmp}, {OOB}")
    a(f"s_lshl_b32 s{sT}, s{sI}, 6\ns_lshl_b32 s{sT2}, s{sWave}, 4\ns_add_u32 s{sT}, s{sT}, s{sT2}\nv_add_u32 v{vT}, s{sT}, v{vM}")
    a(f"v_mul_u32_u24 v{vXo}, 1152, v{vT}\ns_mul_i32 s{sT2}, s{sJ}, 144\nv_add_u32 v{vXo}, s{sT2}, v{vXo}")
    a(f"v_lshl_add_u32 v{vX2}, v{vG}, 3, v{vXo}\nv_add_u32 v{vX2}, 128, v{vX2}\nv_lshl_add_u32 v{vXo}, v{vG}, 4, v{vXo}")
    a(f"v_cmp_gt_u32 s[52:53], 2, v{vG}\nv_cndmask_b32 v{vX2}, v{vTmp}, v{vX2}, s[52:53]")
    a(f"v_lshlrev_b32 v{vTmp+3}, 6, v{vT}\ns_lshl_b32 s{sT2}, s{sJ}, 3\nv_add_u32 v{vTmp+3}, s{sT2}, v{vTmp+3}\nv_cndmask_b32 v{vT2}, v{vTmp}, v{vTmp+3}, s[{sG}:{sG+1}]")
    a(f"s_mul_i32 s{sT}, s{sJ}, {9*256}\nv_lshlrev_b32 v{vH0}, 8, v{vG}\nv_lshl_add_u32 v{vH0}, v{vM}, 4, v{vH0}\nv_add_u32 v{vH0}, s{sT}, v{vH0}")
    a(f"v_lshlrev_b32 v{vH2}, 4, v{vM}\nv_lshl_add_u32 v{vH2}, v{vG}, 3, v{vH2}\ns_add_u32 s{sT}, s{sT}, 2048\nv_add_u32 v{vH2}, s{sT}, v{vH2}\nv_cndmask_b32 v{vH2}, v{vTmp}, v{vH2}, s[52:53]")
    a(f"s_lshr_b32 s{sT}, s2, 3\ns_lshl_b32 s{sT}, s{sT}, 2\ns_add_u32 s{sT}, s{sT}, s{sWave}\ns_mul_i32 s{sT}, s{sT}, {81*128}")
    a(f"v_lshlrev_b32 v{vPF}, 7, v{vLane}\nv_add_u32 v{vPF}, s{sT}, v{vPF}\nv_add_u32 v{vPF+1}, 8192, v{vPF}\nv_cmp_gt_u32 vcc, 17, v{vLane}\nv_cndmask_b32 v{vPF+1}, v{vTmp}, v{vPF+1}, vcc")
    a(f"v_mov_b32 v{vEps}, {fhex(1e-6)}\nv_mov_b32 v{vEps+1}, 0\nv_mov_b32 v{vEps+2}, 0\nv_mov_b32 v{vEps+3}, 0")
    for k in range(3): a(f"v_mov_b32 v{vO+20*k+18}, 0\nv_mov_b32 v{vO+20*k+19}, 0")
    for x in pqload(2): a(x)
    def kvread(h):
        r = vRaw + 12 * (h & 1)
        a.wait_vm(f"kv{((h+1)*KVH-1)//1024}")
        a(f"ds_read_b128 {vr(r,4)}, v{vMM} offset:{h*KVH}")
        a(f"ds_read_b128 {vr(r+4,4)}, v{vAM+h%4} offset:{h*KVH}")
        a(f"ds_read_b64 {vr(r+8,2)}, v{vRM} offset:{h*KVH+KV_RM}")
        a(f"ds_read_b64 {vr(r+10,2)}, v{vAR+h%4} offset:{h*KVH}")
    def kvbuild(h):
        r = vRaw + 12 * (h & 1); odd = h & 1; p8 = h >> 1
        for k in range(2):
            f = vKA + 8 * h + 4 * k
            mo, ro = (0, 2) if not odd else (2, 0)
            a(f"v_cvt_pk_bf16_f32 v{f+mo}, v{r+4*k}, v{r+4*k+1}\nv_cvt_pk_bf16_f32 v{f+mo+1}, v{r+4*k+2}, v{r+4*k+3}")
            a(f"v_cvt_pk_bf16_f32 v{vT}, v{r+8+2*k}, v{r+9+2*k}\nv_mov_b32 v{f+ro+1-odd}, 0")
            a(f"v_cndmask_b32 v{f+ro+odd}, 0, v{vT}, s[{sG+2*p8}:{sG+2*p8+1}]")
    kvread(0); kvread(1)
    for h in range(8):
        kvbuild(h)
        if h + 2 < 8: kvread(h + 2)
    T.stamp(1)
    wl = []
    for k in range(25):
        if k % 4 == 0: wl.append(f"s_mov_b32 s{sT}, {k*1024}")
        wl.append(f"buffer_load_dwordx4 {WO(k//5,k%5)}, v{vL16}, s[{sWO}:{sWO+3}], s{sT} offen offset:{(k%4)*1024}")
    pf = [f"buffer_load_dword v{vH1}, v{vPF}, s[{sWS}:{sWS+3}], 0 offen", f"buffer_load_dword v{vRM}, v{vPF+1}, s[{sWS}:{sWS+3}], 0 offen"] if not opts.get("nopf") else []
    xl = [f"buffer_load_dwordx4 {vr(vXr,4)}, v{vXo}, s[{sX}:{sX+3}], 0 offen",
          f"buffer_load_dwordx4 {vr(vXr+4,4)}, v{vXo}, s[{sX}:{sX+3}], 0 offen offset:64",
          f"buffer_load_dwordx2 {vr(vXr+8,2)}, v{vX2}, s[{sX}:{sX+3}], 0 offen"]
    boff = [22, 0, 4, 6, 10, 12, 16, 18]
    def s1_mfma(n):
        mt, h = divmod(n, 8)
        ac = vS1 + 8 * (n % 3)
        L = []
        if h == 0:
            for d in (24, 6, 12, 18): L += [f"v_accvgpr_mov_b32 a{26*mt+d}, a{26*mt}", f"v_accvgpr_mov_b32 a{26*mt+d+1}, a{26*mt+1}"]
        return L + [f"v_mfma_f32_16x16x32_bf16 {vr(ac+4,4)}, {vr(vKA+8*h+4,4)}, {PQ(mt,boff[h],4)}, {vr(vEps,4)}",
                    f"v_mfma_f32_16x16x32_bf16 {vr(ac,4)}, {vr(vKA+8*h,4)}, {PQ(mt,boff[h],4)}, 0"]
    def s1_valu(n):
        mt, h = divmod(n, 8)
        ac = vS1 + 8 * (n % 3); o = vO + 20 * (mt % 3); rr = vRr + 2 * (h >> 2)
        L = [f"v_rcp_f32 v{ac+4}, v{ac+4}"]
        d = o + 4 * (h >> 1) + 2 * (h & 1)
        L += [None]
        for r in range(4): L.append(f"v_mul_f32 v{ac+r}, v{ac+r}, v{ac+4}")
        if h % 4 == 0: L += [f"v_mul_f32 v{rr}, v{ac+5}, v{ac+4}", f"v_mul_f32 v{rr+1}, v{ac+6}, v{ac+4}"]
        else: L += [f"v_fma_f32 v{rr}, v{ac+5}, v{ac+4}, v{rr}", f"v_fma_f32 v{rr+1}, v{ac+6}, v{ac+4}, v{rr+1}"]
        L += [f"v_cvt_pk_bf16_f32 v{d}, v{ac}, v{ac+1}", f"v_cvt_pk_bf16_f32 v{d+1}, v{ac+2}, v{ac+3}"]
        if h % 4 == 3: L.append(f"v_cvt_pk_bf16_f32 v{o+16+(h>>2)}, v{rr}, v{rr+1}")
        return L
    def s2_mfma(mt):
        o = vO + 20 * (mt % 3)
        return [f"v_mfma_f32_16x16x32_bf16 {AC(mt,t)}, {WO(v,t)}, {vr(o+4*v,4)}, {AC(mt,t) if v else 0}" for v in range(5) for t in range(5)]
    mem = wl + pqload(3) + pf + xl
    extras = {0: mem[:len(mem) // 2], 1: mem[len(mem) // 2:], 2: s2_mfma(0), 3: s2_mfma(1)}
    for x in s1_mfma(0) + s1_mfma(1): a(x)
    for n in range(32):
        mt, h = divmod(n, 8)
        nx = s1_mfma(n + 2) if n + 2 < 32 else []
        ex = extras[mt]; lo = (len(ex) * h) // 8; hi = (len(ex) * (h + 1)) // 8
        fill = nx + ex[lo:hi]
        va = s1_valu(n)
        a(va[0])
        if fill: a(fill[0])
        for x in interleave(va[2:], fill[1:], 0): a(x)
    T.stamp(2)
    for x in s2_mfma(2) + s2_mfma(3): a(x)
    T.stamp(3)
    own = vRaw
    for w in range(4):
        a(f"s_cmp_lg_u32 s{sWave}, {w}\ns_cbranch_scc1 L_k3_w{w}")
        a.cond_begin()
        for mt in range(4):
            for t in range(5):
                if mt == w:
                    f, b = ACr(mt, t)
                    for r in range(4): a(f"{'v_accvgpr_read_b32' if f == 'a' else 'v_mov_b32'} v{own+4*t+r}, {f}{b+r}")
                else:
                    slot = w - (1 if w > mt else 0)
                    a(f"ds_write_b128 v{vL16}, {AC(mt,t)} offset:{RB+((mt*3+slot)*5+t)*1024}")
        a.cond_end()
        a.raw(f"L_k3_w{w}:")
    a(f"s_mul_i32 s{sT}, s{sWave}, {15*1024}\nv_add_u32 v{vL8}, s{sT}, v{vL16}")
    for t in range(5):
        for k in range(2):
            xd = vXr + 2 * t + k
            a(f"v_lshlrev_b32 v{vTmp+4}, 16, v{xd}\nv_and_b32 v{vTmp+5}, 0xffff0000, v{xd}")
            a(f"v_add_f32 v{own+4*t+2*k}, v{own+4*t+2*k}, v{vTmp+4}\nv_add_f32 v{own+4*t+2*k+1}, v{own+4*t+2*k+1}, v{vTmp+5}")
    a("s_waitcnt lgkmcnt(0)\ns_barrier")
    rb = vKA
    for t in range(5):
        for sl in range(3):
            a(f"ds_read_b128 {vr(rb+4*(3*t+sl),4)}, v{vL8} offset:{RB+(sl*5+t)*1024}")
    hp = vS1
    a(f"s_mov_b32 s{sT}, 0x3f803f80\nv_mov_b32 v{vTmp}, 0\nv_mov_b32 v{vTmp+1}, 0")
    for t in range(5):
        for sl in range(3):
            for r in range(4): a(f"v_add_f32 v{own+4*t+r}, v{own+4*t+r}, v{rb+4*(3*t+sl)+r}")
        for k in range(2):
            a(f"v_cvt_pk_bf16_f32 v{hp+2*t+k}, v{own+4*t+2*k}, v{own+4*t+2*k+1}")
        if t == 4: a(f"v_cndmask_b32 v{hp+8}, 0, v{hp+8}, s[52:53]\nv_cndmask_b32 v{hp+9}, 0, v{hp+9}, s[52:53]")
        if t == 1: a(f"buffer_store_dwordx4 {vr(hp,4)}, v{vH0}, s[{sH}:{sH+3}], 0 offen{hf}")
        if t == 3: a(f"buffer_store_dwordx4 {vr(hp+4,4)}, v{vH0}, s[{sH}:{sH+3}], 0 offen offset:1024{hf}")
        if t == 4: a(f"buffer_store_dwordx2 {vr(hp+8,2)}, v{vH2}, s[{sH}:{sH+3}], 0 offen{hf}")
    for r in range(10):
        a(f"v_dot2_f32_bf16 v{vTmp}, v{hp+r}, s{sT}, v{vTmp}\nv_dot2_f32_bf16 v{vTmp+1}, v{hp+r}, v{hp+r}, v{vTmp+1}")
    xg_reduce_n(a, [vTmp, vTmp + 1], [vTmp + 2, vTmp + 3])
    a(f"buffer_store_dwordx2 {vr(vTmp,2)}, v{vT2}, s[{sST}:{sST+3}], 0 offen{hf}")
    T.flush(4, vT, vLane)
    a("L_k3_end:\ns_endpgm")
    return header(name) + a.text(), descriptor(name, 512, 256, 96 if ts else 64)
```

```python
import sys
from common import *
from k1 import gen_k1, K1_LDS
from k3 import gen_k3, K3_LDS
from k4 import gen_k4, K4_LDS
from k5 import gen_k5
NAME = "sequential_preLN__linear_attn_block__dense_activation_squared_relu__prompt"
def dbg_kernel():
    a = Prog()
    a("s_cmp_ge_u32 s2, 1\ns_cbranch_scc1 L_dbg_end")
    a(f"s_load_dwordx4 s[4:7], s[0:1], {KA_DBG}")
    a("s_waitcnt lgkmcnt(0)")
    srd(a, 8, 6, WS_TS, 4 << 20); srd(a, 12, 4, 0, 256)
    tab = [(0,0),(0,1),(0,2),(1,0),(1,1),(1,3),(1,4),(2,0),(2,5),(2,6),(2,7),(2,8),(2,9),(3,0),(3,1),(0,0)]
    a("v_mov_b32 v1, 0")
    for l, (k, sl) in enumerate(tab):
        a(f"s_mov_b32 s20, {k*(1<<20) + 100*8*64 + 4*sl}\nv_writelane_b32 v1, s20, {l}")
    a("buffer_load_dword v2, v1, s[8:11], 0 offen")
    a("v_readfirstlane_b32 s20, v2\nv_subrev_u32 v2, s20, v2\nv_lshlrev_b32 v3, 2, v0")
    a("buffer_store_dword v2, v3, s[12:15], 0 offen")
    a("L_dbg_end:\ns_endpgm")
    return a.text()
def probe_kernel(kind):
    a = Prog()
    a(f"s_cmp_ge_u32 s2, {8 if kind in ('code', 'tlb') else 1}\ns_cbranch_scc1 L_probe_end")
    if kind == "tlb":
        a(f"s_load_dwordx2 s[12:13], s[0:1], {KA_WS}\ns_load_dwordx2 s[14:15], s[0:1], {KA_OUT}\ns_waitcnt lgkmcnt(0)")
        srd(a, 16, 12, 0, WS_END); srd(a, 20, 14, 0, S * D * 2)
        a("v_lshlrev_b32 v5, 16, v0\nv_add_u32 v6, 0x1000000, v5\nv_add_u32 v7, 0x2000000, v5")
        a("buffer_load_dword v8, v5, s[16:19], 0 offen\nbuffer_load_dword v9, v6, s[16:19], 0 offen\nbuffer_load_dword v10, v7, s[16:19], 0 offen\nbuffer_load_dword v11, v5, s[20:23], 0 offen")
    if kind in ("code", "tlb"):
        a.raw("s_getpc_b64 s[4:5]\nL_probe_pc:\ns_sub_u32 s4, s4, L_probe_pc-qkv_kernel\ns_subb_u32 s5, s5, 0")
        a.raw("s_mov_b32 s8, s4\ns_and_b32 s9, s5, 0xffff\ns_mov_b32 s10, L_probe_pc-qkv_kernel\ns_mov_b32 s11, 0x20000")
        a("v_lshlrev_b32 v1, 7, v0\nv_add_u32 v2, 0x8000, v1")
        a("buffer_load_dword v3, v1, s[8:11], 0 offen\nbuffer_load_dword v4, v2, s[8:11], 0 offen\ns_waitcnt vmcnt(0)")
    elif kind != "none":
        a(f"s_load_dwordx2 s[4:5], s[0:1], {KA_BX if kind == 'bx' else KA_WS}")
        a("s_waitcnt lgkmcnt(0)")
        srd(a, 8, 4, 0 if kind == "bx" else (100 << 20) if kind == "ws" else (250 << 20), S * D * 2)
        a("v_mov_b32 v1, 0")
        for k in range(20):
            a("buffer_load_dword v2, v1, s[8:11], 0 offen\nv_and_b32 v2, 0, v2\nv_add_u32 v1, 0x19000, v1\nv_add_u32 v1, v1, v2")
    a("L_probe_end:\ns_endpgm")
    return a.text()
def build(opts):
    if opts.get("tsc"): Stamps.op = "s_memtime"
    ref = open(f"cdna_kernels/{NAME}.s.ref").read().split("\n")
    head = [l for l in ref if l.startswith(";") and "@launch" not in l and "Override launch" not in l and "grid=ceil" not in l and l.startswith("; ") and not l.startswith(";    ;")]
    head = [l for l in ref[:12]]
    ks = [("qkv_kernel", gen_k1("qkv_kernel", opts), 256, 512, K1_LDS),
          ("attn_kernel", gen_k3("attn_kernel", opts), 256, 256, K3_LDS),
          ("ffn_kernel", gen_k4("ffn_kernel", opts.get("p_flags", ""), opts), 256, 256, K4_LDS),
          ("reduce_kernel", gen_k5("reduce_kernel", opts), 576, 256, 0)]
    out = list(head)
    if opts.get("probe"): out.append("; @launch kernel=probe_kernel grid=(8,1,1) block=(256,1,1) lds=0" if opts["probe"] in ("code", "tlb") else "; @launch kernel=probe_kernel grid=(1,1,1) block=(64,1,1) lds=0")
    for n, _, g, b, l in ks: out.append(f"; @launch kernel={n} grid=({g},1,1) block=({b},1,1) lds={l}")
    if opts.get("dbgk"):
        out.append("; @launch kernel=dbg_kernel grid=(1,1,1) block=(64,1,1) lds=0")
    for k in range(opts.get("dummy", 0)): out.append("; @launch kernel=dummy_kernel grid=(256,1,1) block=(256,1,1) lds=0")
    out.append('.amdgcn_target "amdgcn-amd-amdhsa--gfx950"')
    txt = "\n".join(out) + "\n"
    for n, (t, d), *_ in ks: txt += t
    if opts.get("dummy"): txt += header("dummy_kernel") + "  s_endpgm\n"
    if opts.get("dbgk"): txt += header("dbg_kernel") + dbg_kernel()
    if opts.get("probe"): txt += header("probe_kernel") + probe_kernel(opts["probe"])
    for n, (t, d), *_ in ks: txt += d
    if opts.get("dummy"): txt += descriptor("dummy_kernel", 8, 8, 16)
    if opts.get("dbgk"): txt += descriptor("dbg_kernel", 32, 32, 48)
    if opts.get("probe"): txt += descriptor("probe_kernel", 32, 32, 48)
    return txt
if __name__ == "__main__":
    opts = {}
    outp = f"cdna_kernels/{NAME}.s"
    for x in sys.argv[1:]:
        k, v = x.split("=", 1)
        if k == "out": outp = v
        else: opts[k] = int(v) if v.isdigit() else (" " + v.replace("+", " ") if k.endswith("flags") else v)
    open(outp, "w").write(build(opts))
```
